```python
import torch

def _softmax(x, axis=-1):
    return torch.softmax(x, dim=axis)
def _gelu(x):
    return torch.nn.functional.gelu(x, approximate="tanh")
def _silu(x):
    return torch.nn.functional.silu(x)
def _sigmoid(x):
    return torch.sigmoid(x)
def _layernorm(x, axis=-1, eps=1e-5):
    m = x.mean(dim=axis, keepdim=True)
    v = x.var(dim=axis, keepdim=True, unbiased=False)
    return (x - m) / torch.sqrt(v + eps)
def _scatter_add(tgt, idx, src, axis=0):
    return tgt.clone().index_add_(axis, idx, src)
def _segment_sum(src, seg, n):
    out = torch.zeros((n,) + src.shape[1:], dtype=src.dtype)
    return out.index_add_(0, seg, src)
def _pad(x, pw):
    flat = tuple(v for pair in reversed(pw) for v in pair)
    return torch.nn.functional.pad(x, flat)

kernel_name = 'sequential_preLN__compressed_kv_cla__geglu_ffn__decode'

def setup_inputs():

    _w = (lambda a: (lambda t: t.to(torch.bfloat16) if t.is_floating_point() else t)(torch.as_tensor(a)))
    def _A_setup():
        B, H, Sq, Sk, D, M = 4, 32, 1, 4096, 128, 512
        Dc = 4 * D
        return {
            "x": _w((lambda *s: torch.randn(*s, dtype=torch.bfloat16) * 0.05)(B, Sq, M)),
            "c_kv": _w((lambda *s: torch.randn(*s, dtype=torch.bfloat16) * 0.4)(B, Sk, Dc)),
            "w_q": _w((lambda *s: torch.randn(*s, dtype=torch.bfloat16) * 3.2)(M, H, D) * (M ** -0.5)),
            "w_uk": _w((lambda *s: torch.randn(*s, dtype=torch.bfloat16) * 3.2)(Dc, H, D) * (Dc ** -0.5)),
            "w_uv": _w((lambda *s: torch.randn(*s, dtype=torch.bfloat16) * 0.4)(Dc, H, D) * (Dc ** -0.5)),
            "w_o": _w((lambda *s: torch.randn(*s, dtype=torch.bfloat16) * 0.4)(H, D, M) * ((H * D) ** -0.5)),
        }
    _A_in = _A_setup()

    def _B_setup():
        B, S, D, F = 4, 1, 512, 1792
        return {
            "x": _w((lambda *s: torch.randn(*s, dtype=torch.bfloat16) * 0.05)(B, S, D)),
            "w_gate": _w((lambda *s: torch.randn(*s, dtype=torch.bfloat16) * 0.05)(D, F)),
            "w_up": _w((lambda *s: torch.randn(*s, dtype=torch.bfloat16) * 0.05)(D, F)),
            "w_down": _w((lambda *s: torch.randn(*s, dtype=torch.bfloat16) * 0.05)(F, D)),
        }
    _B_in = _B_setup()

    return {
        "A_x": _A_in["x"],
        "A_c_kv": _A_in["c_kv"],
        "A_w_q": _A_in["w_q"],
        "A_w_uk": _A_in["w_uk"],
        "A_w_uv": _A_in["w_uv"],
        "A_w_o": _A_in["w_o"],
        "B_x": _B_in["x"],
        "B_w_gate": _B_in["w_gate"],
        "B_w_up": _B_in["w_up"],
        "B_w_down": _B_in["w_down"],
    }

def reference(A_x, A_c_kv, A_w_q, A_w_uk, A_w_uv, A_w_o, B_x, B_w_gate, B_w_up, B_w_down):
    def _A_ref(x, c_kv, w_q, w_uk, w_uv, w_o):
        B, Sq, M = x.shape[0], x.shape[1], x.shape[2]
        Sk = c_kv.shape[1]
        H, D = w_q.shape[1], w_q.shape[2]
        q = torch.einsum("bqm,mhd->bhqd", x, w_q)
        k = torch.einsum("bkc,chd->bhkd", c_kv, w_uk)
        v = torch.einsum("bkc,chd->bhkd", c_kv, w_uv)
        scores = torch.einsum("bhqd,bhkd->bhqk", q, k) * (D ** -0.5)
        off = Sk - Sq
        qi = torch.arange(Sq)[:, None]
        kj = torch.arange(Sk)[None, :]
        cmask = kj <= (qi + off)
        scores = torch.where(cmask[None, None], scores, -1e9)
        p = _softmax(scores, axis=-1)
        ctx = torch.einsum("bhqk,bhkd->bhqd", p, v)
        return torch.einsum("bhqd,hdm->bqm", ctx, w_o)

    def _B_ref(x, w_gate, w_up, w_down):
        return (_gelu(x @ w_gate) * (x @ w_up)) @ w_down

    x = A_x
    h = x + _A_ref(_layernorm(x, axis=-1), A_c_kv, A_w_q, A_w_uk, A_w_uv, A_w_o)
    h2 = h + _B_ref(_layernorm(h, axis=-1), B_w_gate, B_w_up, B_w_down)
    return h2
```

```python
import re
TRANS = ('v_exp_f32','v_log_f32','v_rcp_f32','v_rsq_f32','v_sqrt_f32','v_sin_f32','v_cos_f32','v_rcp_iflag_f32')
def regs(tok):
    tok = tok.strip()
    tok = re.sub(r'^-|^\|','',tok); tok = tok.replace('|','')
    m = re.fullmatch(r'abs\((.*)\)', tok)
    if m: tok = m.group(1)
    m = re.fullmatch(r'([vsa])\[(\d+):(\d+)\]', tok)
    if m: return {f'{m.group(1)}{i}' for i in range(int(m.group(2)), int(m.group(3))+1)}
    m = re.fullmatch(r'([vsa])(\d+)', tok)
    if m: return {tok}
    if tok in ('vcc',): return {'vcc'}
    if tok in ('vcc_lo','vcc_hi'): return {'vcc'}
    if tok in ('exec','exec_lo','exec_hi'): return {'exec'}
    if tok == 'm0': return {'m0'}
    return set()
class I:
    def __init__(self, text):
        self.text = text
        t = text.split(';')[0].strip()
        self.op = t.split()[0] if t else ''
        rest = t[len(self.op):].strip()
        ops = []; d = 0; cur = ''
        for ch in rest:
            if ch in '[(': d += 1
            if ch in '])': d -= 1
            if ch == ',' and d == 0: ops.append(cur.strip()); cur = ''
            else: cur += ch
        if cur.strip(): ops.append(cur.strip())
        self.mods = ''
        if ops:
            parts = ops[-1].split()
            ops[-1] = parts[0]; self.mods = ' '.join(parts[1:])
        self.ops = ops
        op = self.op
        self.valu = op.startswith('v_') and not op.startswith('v_mfma') and op != 'v_nop'
        self.mfma = op.startswith('v_mfma')
        self.salu = op.startswith('s_') and not op.startswith(('s_load','s_waitcnt','s_nop','s_barrier','s_branch','s_cbranch','s_endpgm','s_sleep','s_memrealtime','s_memtime','s_setprio'))
        self.ds = op.startswith('ds_')
        self.vmem = op.startswith(('buffer_','global_'))
        self.dpp = 'dpp' in op or 'row_' in self.mods or 'quad_perm' in self.mods
        self.trans = op.replace('_e32','').replace('_e64','') in TRANS
        self.perml = op.startswith('v_permlane')
        self.rdlane = op.startswith(('v_readlane','v_readfirstlane'))
        R = [regs(o) for o in ops]
        w = set(); r = set()
        if self.mfma: w = R[0]; r = R[1]|R[2]|R[3]; self.A = R[1]; self.B = R[2]; self.C = R[3]
        elif self.valu:
            if op.startswith(('v_swap','v_permlane16_swap','v_permlane32_swap')): w = R[0]|R[1]; r = R[0]|R[1]
            else:
                w = R[0]; r = set().union(*R[1:]) if len(R) > 1 else set()
                if op.startswith(('v_fmac','v_pk_fmac','v_dot2c','v_writelane')) or self.dpp: r |= R[0]
                if op.startswith('v_cndmask') and len(ops) == 3: r |= {'vcc'}
        elif self.ds:
            if op.startswith(('ds_read','ds_bpermute','ds_swizzle')): w = R[0]; r = set().union(*R[1:])
            else: r = set().union(*R)
        elif self.vmem:
            lds = 'lds' in op or ' lds' in ' '+self.mods
            if 'load' in op and not lds: w = R[0]; r = set().union(*R[1:])
            else: r = set().union(*R)
            if lds: r |= {'m0'}
            self.ldsdma = lds
            self.widestore = 'store' in op and ('x4' in op or 'x3' in op)
            if self.widestore:
                self.sdata = R[1] if op.startswith('global_') else R[0]
        elif self.salu:
            if op.startswith(('s_cmp','s_bitcmp')): r = set().union(*R)
            else:
                w = R[0] if R else set(); r = set().union(*R[1:]) if len(R) > 1 else set()
                if 'saveexec' in op: w |= {'exec'}
        self.w = w; self.r = r
    def states(self):
        if self.op == 's_nop': return int(self.ops[0], 0) + 1
        return 1
def need(p, c):
    n = 0
    vw = {x for x in p.w if x[0] in 'va'} ; sw = {x for x in p.w if x[0] == 's' or x == 'vcc'}
    if p.valu:
        if c.mfma and vw & c.r: n = max(n, 2)
        if c.valu and c.dpp and vw & c.r: n = max(n, 2)
        if c.perml and vw & c.r: n = max(n, 2)
        if c.rdlane and vw & c.r: n = max(n, 1)
        if p.trans and c.valu and vw & c.r: n = max(n, 1)
        if p.trans and (c.vmem or c.ds) and vw & c.r: n = max(n, 1)
        sw2 = {x for x in sw if x != 'vcc' or True}
        if c.valu and sw2 & c.r: n = max(n, 4 if c.op.startswith(('v_readlane','v_writelane')) else 2)
        if c.vmem and sw2 & c.r: n = max(n, 5)
        if 'exec' in p.w and (c.mfma or c.dpp or c.perml or c.rdlane): n = max(n, 5)
    if p.mfma:
        D = p.w
        assert '16x16x32' in p.op, p.text
        if c.mfma:
            if D & (c.A | c.B): n = max(n, 8)
            if D & c.C and c.C != D: n = max(n, 6)
            if D & c.w and c.C != D: n = max(n, 8)
        elif (c.valu or c.vmem or c.ds) and D & (c.r | c.w): n = max(n, 8)
        if c.valu and p.C & c.w: n = max(n, 3)
    if p.salu and 'm0' in p.w and c.vmem and getattr(c, 'ldsdma', False): n = max(n, 1)
    if p.vmem and getattr(p, 'widestore', False) and (c.valu or c.mfma or c.ds or c.vmem) and p.sdata & c.w: n = max(n, 2)
    return n
def _pad(hist, c):
    dist = 0; pad = 0
    for p in reversed(hist):
        k = need(p, c)
        if k > dist: pad = max(pad, k - dist)
        dist += p.states()
        if dist >= 12: break
    return pad
def fix(text):
    lines = text.split('\n')
    out = []; hists = [[]]; saved = {}; seen = {}; added = 0
    for line in lines:
        s = line.split(';')[0].strip()
        if not s or s.startswith('.') and not s.endswith(':'):
            if s.startswith('.amdhsa_kernel') or s.startswith('.section'): hists = [[]]
            out.append(line); continue
        if s.endswith(':'):
            lab = s[:-1]
            hists = hists + saved.pop(lab, [])
            seen[lab] = len(out)
            out.append(line); continue
        c = I(line)
        pad = max([_pad(h, c) for h in hists] + [0])
        if pad:
            nop = I(f'    s_nop {pad-1}'); out.append(nop.text + '   ; hz'); added += 1
            for h in hists: h.append(nop)
        out.append(line)
        for h in hists: h.append(c)
        uniq = []
        for h in hists:
            h2 = h[-14:]
            if not any(len(u) == len(h2) and all(a is b for a, b in zip(u, h2)) for u in uniq): uniq.append(h2)
        hists = uniq
        if c.op.startswith(('s_branch', 's_cbranch')):
            lab = c.ops[0]
            if lab in seen:
                for h in hists:
                    hh = list(h); k = 0
                    for l2 in out[seen[lab]:]:
                        s2 = l2.split(';')[0].strip()
                        if not s2 or s2.endswith(':') or s2.startswith('.'): continue
                        c2 = I(l2)
                        assert _pad(hh, c2) == 0, f'hazard across back edge to {lab}: {l2}'
                        hh.append(c2); k += 1
                        if k > 12: break
            else:
                saved.setdefault(lab, []).extend([list(h) for h in hists])
            if c.op == 's_branch': hists = [[]]
        if c.op == 's_endpgm': hists = [[]]
    return '\n'.join(out), added
```

```python
import sys, struct
import hazfix

NAME = 'sequential_preLN__compressed_kv_cla__geglu_ffn__decode_kernel'

WS_EPOCH = 0
WS_FLAGP = 0x1000
WS_FLAGN = 0x2000
WS_QABS  = 0x10000
WS_CLR   = 0x100000
WS_PART  = WS_CLR
WS_STATM = WS_PART + 0x400000
WS_STATL = WS_STATM + 0x4000
WS_CTX   = WS_STATM + 0x8000
WS_HPART = WS_CTX + 0x20000
WS_ACT   = WS_HPART + 0x8000
CLR_PER  = 34 * 1024
WS_STAMP = 0x800000

L_CKV = 0
L_QA  = 0x20000
L_PL  = 0x24000
L_MX  = 0x25200
L_XN  = 0x25800
L_Q   = 0x26800
L_CC  = 0x27000
LDS_BYTES = 0x28000
L_WV   = 0
L_ROLE = 40960
L_RED  = L_QA
L_HN   = L_QA + 0x2000
L_H32  = L_QA + 0x2000

def f2i(x): return struct.unpack('<I', struct.pack('<f', x))[0]
SCALE = (128 ** -0.5) * 1.4426950408889634

class G:
    def __init__(self, opt):
        self.o = opt
        self.L = []
        self.nst = 0
        self.uid = 0
    def __call__(self, s):
        for line in s.strip('\n').split('\n'):
            line = line.rstrip()
            if not line.strip(): continue
            t = line.strip()
            self.L.append(t if t.endswith(':') else '    ' + t)
    def lab(self, p):
        self.uid += 1
        return f'L_{p}{self.uid}'
    def stamp(self, k):
        if self.o.get('stamps'):
            self(f's_memrealtime s[{64+2*k}:{65+2*k}]')

pX, pCKV, pWQ, pWUK, pWUV, pWO, pWG, pWU, pWD, pOUT, pWS = ('s[4:5]','s[6:7]','s[8:9]','s[10:11]','s[12:13]','s[14:15]','s[18:19]','s[20:21]','s[22:23]','s[24:25]','s[28:29]')
sW, sX, sR, sTAG, sCNT = 's3', 's30', 's31', 's32', 's33'
sB, sHH, sS, sH, sCQ = 's34', 's35', 's36', 's37', 's38'
t0, t1, t2, t3 = 's40', 's41', 's42', 's43'
sM = 's[44:45]'
vL, vN, vG = 'v1', 'v2', 'v3'
def V(a, n=1): return f'v{a}' if n == 1 else f'v[{a}:{a+n-1}]'
MFMA = 'v_mfma_f32_16x16x32_bf16'

def allreduce(g, op, regs, tmps, full=True):
    for k in (1, 2, 4, 8):
        for r in regs:
            g(f'{op}_dpp {r}, {r}, {r} row_ror:{k} row_mask:0xf bank_mask:0xf')
    if full:
        for sw in ('v_permlane16_swap_b32', 'v_permlane32_swap_b32'):
            for r, t in zip(regs, tmps): g(f'v_mov_b32 {t}, {r}')
            for r, t in zip(regs, tmps): g(f'{sw} {t}, {r}')
            for r, t in zip(regs, tmps): g(f'{op} {r}, {r}, {t}')

def rne(g, r):
    g(f'v_cvt_pk_bf16_f32 {r}, {r}, {r}')
    g(f'v_and_b32 {r}, 0xffff0000, {r}')

def poll_begin(g, name):
    lab = g.lab(name)
    g(f's_mov_b32 {sCNT}, 0')
    g(f'{lab}:')
    return lab
def poll_end(g, lab):
    done = lab + '_ok'
    g(f'''
    s_cbranch_vccz {done}
    s_add_u32 {sCNT}, {sCNT}, 1
    s_cmp_lt_u32 {sCNT}, {g.o.get('maxpoll', 65536)}
    s_cbranch_scc1 {lab}
    {done}:
    ''')
def check_sent(g, tmp, regs):
    regs = list(regs)
    if len(regs) == 1:
        g(f'v_cmp_eq_u32 vcc, -1, {regs[0]}'); return
    if len(regs) == 2:
        g(f'v_max_u32 {tmp}, {regs[0]}, {regs[1]}'); rest = []
    else:
        g(f'v_max3_u32 {tmp}, {regs[0]}, {regs[1]}, {regs[2]}'); rest = regs[3:]
    while rest:
        if len(rest) >= 2:
            g(f'v_max3_u32 {tmp}, {tmp}, {rest[0]}, {rest[1]}'); rest = rest[2:]
        else:
            g(f'v_max_u32 {tmp}, {tmp}, {rest[0]}'); rest = []
    g(f'v_cmp_eq_u32 vcc, -1, {tmp}')

def ckv_dma(g, rev):
    nt = g.o['nt']
    g(f'''
    s_lshl_b32 {t0}, {sB}, 22
    s_lshl_b32 {t1}, {sS}, 17
    s_add_u32 {t0}, {t0}, {t1}
    s_lshl_b32 {t2}, {sW}, 15
    s_add_u32 {t0}, {t0}, {t2}
    v_lshlrev_b32 v8, 4, {vL}
    v_add_u32 v8, {t0}, v8
    ''')
    order = range(7, -1, -1) if rev else range(8)
    for j in order:
        g(f's_add_u32 m0, {t2}, {j*4096}')
        rows = range(3, -1, -1) if rev else range(4)
        for q in rows:
            i = 4*j + q
            f = (i & 15) ^ ((i & 1) << 3)
            g(f'v_xor_b32 v9, {hex((j << 12) | (f << 4))}, v8')
            g(f'global_load_lds_dwordx4 v9, {pCKV} offset:{q*1024} {nt}')

ST = 232
def wuv_stage(g):
    nt = g.o['nt']
    g(f'''
    s_lshr_b32 {t0}, {sR}, 3
    s_lshl_b32 {t1}, {sX}, 2
    s_add_u32 {t0}, {t0}, {t1}
    s_lshl_b32 {t0}, {t0}, 8
    s_and_b32 {t1}, {sR}, 3
    s_lshl_b32 {t1}, {t1}, 20
    s_add_u32 {t0}, {t0}, {t1}
    s_lshr_b32 {t1}, {sW}, 2
    s_lshl_b32 {t1}, {t1}, 19
    s_add_u32 {t0}, {t0}, {t1}
    s_and_b32 {t1}, {sW}, 3
    s_lshl_b32 {t1}, {t1}, 15
    s_add_u32 {t0}, {t0}, {t1}
    v_lshlrev_b32 v8, 17, {vG}
    v_lshl_add_u32 v8, {vN}, 4, v8
    v_add_u32 v8, {t0}, v8
    ''')
    for j in range(4):
        g(f'v_xor_b32 v9, {j << 13}, v8')
        g(f'global_load_dwordx4 {V(ST+4*j,4)}, v9, {pWUV} {nt}')

def gen(opt):
    o = dict(nt='nt', stamps=False, maxpoll=65536)
    o.update(opt)
    g = G(o)
    nt = o['nt']
    g(f'''
    s_cmp_ge_u32 s2, 0x100
    s_cbranch_scc1 L_exit
    s_load_dwordx16 s[4:19], s[0:1], 0
    s_load_dwordx8 s[20:27], s[0:1], 64
    s_load_dwordx2 s[28:29], s[0:1], 96
    ''')
    if o['stamps']:
        for k in range(16): g(f's_mov_b32 s{64+2*k}, 0')
    g.stamp(0)
    g(f'''
    v_lshrrev_b32 v4, 6, v0
    v_and_b32 {vL}, 63, v0
    v_readfirstlane_b32 {sW}, v4
    v_and_b32 {vN}, 15, {vL}
    v_lshrrev_b32 {vG}, 4, {vL}
    v_mov_b32 v24, 0
    s_and_b32 {sX}, s2, 7
    s_lshr_b32 {sR}, s2, 3
    s_lshr_b32 {sB}, {sX}, 1
    s_and_b32 {sHH}, {sR}, 1
    s_and_b32 {sS}, {sX}, 1
    s_lshl_b32 {sS}, {sS}, 4
    s_lshr_b32 {t0}, {sR}, 1
    s_add_u32 {sS}, {sS}, {t0}
    s_lshr_b32 {t0}, {sR}, 3
    s_lshl_b32 {sH}, {sX}, 2
    s_add_u32 {sH}, {sH}, {t0}
    s_cmp_eq_u32 {sHH}, 1
    s_waitcnt lgkmcnt(0)
    s_load_dword {sTAG}, {pWS}, {WS_EPOCH}
    s_cbranch_scc1 L_nonp
    ''')
    WQ, AP, SEL, D1, D2, WUKF, QF, DQ = 64, 128, 160, 164, 168, 172, 188, 204
    g(f'''
    s_bfe_u32 {sCQ}, {sR}, 0x20001
    s_cmp_lg_u32 {sW}, 7
    s_cbranch_scc1 L_p_noclr
    s_lshl_b32 {t0}, {sH}, 10
    s_lshl_b32 {t1}, {sCQ}, 8
    s_add_u32 {t0}, {t0}, {t1}
    s_add_u32 {t0}, {t0}, {WS_QABS}
    v_lshlrev_b32 v8, 15, {vG}
    v_lshl_add_u32 v8, {vN}, 4, v8
    v_add_u32 v8, {t0}, v8
    v_mov_b32 v12, -1
    v_mov_b32 v13, -1
    v_mov_b32 v14, -1
    v_mov_b32 v15, -1
    global_store_dwordx4 v8, v[12:15], {pWS} sc1
    L_p_noclr:
    s_and_b32 {t0}, {sW}, 3
    s_lshl_b32 {t0}, {t0}, 10
    v_lshlrev_b32 v9, 4, {vL}
    v_add_u32 v9, {t0}, v9
    global_load_dwordx4 v[4:7], v9, {pX}
    s_lshl_b32 {t0}, {sW}, 19
    s_lshl_b32 {t1}, {sCQ}, 17
    s_or_b32 {t0}, {t0}, {t1}
    s_lshl_b32 {t1}, {sH}, 8
    s_or_b32 {t0}, {t0}, {t1}
    v_lshlrev_b32 v10, 14, {vG}
    v_lshl_add_u32 v10, {vN}, 4, v10
    v_add_u32 v10, {t0}, v10
    ''')
    for i in range(8):
        for p in range(2):
            g(f'v_xor_b32 v11, {hex((i << 16) | (p << 13))}, v10')
            g(f'global_load_dwordx4 {V(WQ+8*i+4*p,4)}, v11, {pWQ} {nt}')
    g(f'''
    s_lshl_b32 {t0}, {sCQ}, 20
    s_lshl_b32 {t1}, {sW}, 17
    s_or_b32 {t0}, {t0}, {t1}
    s_lshl_b32 {t1}, {sH}, 8
    s_or_b32 {t0}, {t0}, {t1}
    v_xor_b32 v10, {vN}, {vG}
    v_lshlrev_b32 v10, 4, v10
    v_lshl_add_u32 v10, {vG}, 13, v10
    v_add_u32 v10, {t0}, v10
    s_lshl_b32 {t2}, {sW}, 14
    ''')
    for u in range(4):
        g(f's_add_u32 m0, {t2}, {u*1024}')
        g(f'v_xor_b32 v11, {hex((u << 15) | (u << 6))}, v10')
        g(f'global_load_lds_dwordx4 v11, {pWUK} {nt}')
    g.stamp(1)
    g(f'''
    s_waitcnt lgkmcnt(0)
    s_mul_i32 {sTAG}, {sTAG}, 0x19660d
    s_add_u32 {sTAG}, {sTAG}, 0x3c6ef35f
    s_cmp_lg_u32 {sW}, 7
    s_cbranch_scc1 L_p_noflag
    s_lshl_b32 {t0}, {sX}, 7
    s_lshl_b32 {t1}, {sR}, 2
    s_add_u32 {t0}, {t0}, {t1}
    s_add_u32 {t0}, {t0}, {WS_FLAGP}
    v_mov_b32 v8, {t0}
    v_mov_b32 v10, {sTAG}
    v_mov_b32 v11, {sTAG}
    s_mov_b64 exec, 1
    s_waitcnt vmcnt(21)
    global_store_dwordx2 v8, v[10:11], {pWS} sc1
    s_mov_b64 exec, -1
    L_p_noflag:
    ''')
    g(f'''
    v_and_b32 v8, 1, {vN}
    v_cmp_eq_u32 vcc, 1, v8
    v_mov_b32 v10, 0x0c0c0100
    v_mov_b32 v11, 0x01000c0c
    v_mov_b32 v12, 0x0c0c0302
    v_mov_b32 v13, 0x03020c0c
    v_cndmask_b32 v10, v10, v11, vcc
    v_cndmask_b32 v12, v12, v13, vcc
    v_and_b32 v8, 2, {vN}
    v_cmp_eq_u32 vcc, 0, v8
    v_mov_b32 v11, 0x0c0c0c0c
    v_cndmask_b32 {V(SEL)}, v11, v10, vcc
    v_cndmask_b32 {V(SEL+1)}, v10, v11, vcc
    v_cndmask_b32 {V(SEL+2)}, v11, v12, vcc
    v_cndmask_b32 {V(SEL+3)}, v12, v11, vcc
    s_waitcnt vmcnt(20)
    ''')
    for k in range(4):
        g(f'v_lshlrev_b32 v{8+2*k}, 16, v{4+k}')
        g(f'v_and_b32 v{9+2*k}, 0xffff0000, v{4+k}')
    g('''
    v_add_f32 v16, v8, v9
    v_add_f32 v17, v10, v11
    v_add_f32 v18, v12, v13
    v_add_f32 v19, v14, v15
    v_add_f32 v16, v16, v17
    v_add_f32 v18, v18, v19
    v_add_f32 v16, v16, v18
    ''')
    allreduce(g, 'v_add_f32', ['v16'], ['v17'])
    g(f'v_mul_f32 v16, {hex(f2i(1/512))}, v16')
    for k in range(8): g(f'v_sub_f32 v{20+k}, v{8+k}, v16')
    g('v_mul_f32 v18, v20, v20')
    for k in range(1, 8): g(f'v_fmac_f32 v18, v{20+k}, v{20+k}')
    allreduce(g, 'v_add_f32', ['v18'], ['v17'])
    g(f'v_mul_f32 v18, {hex(f2i(1/512))}, v18')
    rne(g, 'v16'); rne(g, 'v18')
    g(f'v_add_f32 v18, {hex(f2i(1e-5))}, v18')
    rne(g, 'v18')
    g('v_sqrt_f32 v18, v18')
    rne(g, 'v18')
    g('v_rcp_f32 v18, v18')
    for k in range(8): g(f'v_sub_f32 v{8+k}, v{8+k}, v16')
    for k in range(4): g(f'v_cvt_pk_bf16_f32 v{4+k}, v{8+2*k}, v{9+2*k}')
    for k in range(4):
        g(f'v_lshlrev_b32 v{8+2*k}, 16, v{4+k}')
        g(f'v_and_b32 v{9+2*k}, 0xffff0000, v{4+k}')
    for k in range(8): g(f'v_mul_f32 v{8+k}, v{8+k}, v18')
    for k in range(4): g(f'v_cvt_pk_bf16_f32 v{4+k}, v{8+2*k}, v{9+2*k}')
    g(f'''
    s_and_b32 {t0}, {sW}, 3
    s_lshl_b32 {t0}, {t0}, 10
    s_add_u32 {t0}, {t0}, {L_XN}
    v_lshlrev_b32 v9, 4, {vL}
    v_add_u32 v9, {t0}, v9
    ds_write_b128 v9, v[4:7]
    s_lshl_b32 {t0}, {sW}, 7
    s_lshl_b32 {t1}, {sCQ}, 5
    s_add_u32 {t0}, {t0}, {t1}
    s_add_u32 {t0}, {t0}, {L_XN}
    v_lshrrev_b32 v8, 2, {vN}
    v_lshlrev_b32 v8, 10, v8
    v_lshl_add_u32 v8, {vG}, 2, v8
    v_add_u32 v8, {t0}, v8
    s_waitcnt lgkmcnt(0)
    s_barrier
    ''')
    for i in range(8):
        g(f'v_xor_b32 v9, {i*16}, v8')
        g(f'ds_read_b32 v{16+i}, v9')
    for i in range(8):
        g(f's_waitcnt lgkmcnt({7-i})')
        for k in range(4):
            g(f'v_perm_b32 {V(AP+4*i+k)}, v{16+i}, v{16+i}, {V(SEL+k)}')
    g.stamp(2)
    for i in range(8):
        R = WQ + 8*i
        g(f'''
        s_waitcnt vmcnt({4 + 2*(7-i)})
        v_swap_b32 {V(R+2)}, {V(R+4)}
        v_swap_b32 {V(R+3)}, {V(R+5)}
        {MFMA} {V(D1,4)}, {V(AP+4*i,4)}, {V(R,4)}, {V(D1,4) if i else 0}
        {MFMA} {V(D2,4)}, {V(AP+4*i,4)}, {V(R+4,4)}, {V(D2,4) if i else 0}
        ''')
    g.stamp(3)
    g(f'''
    s_lshl_b32 {t0}, {sW}, 11
    s_add_u32 {t0}, {t0}, {L_QA}
    v_lshlrev_b32 v8, 4, {vL}
    v_add_u32 v8, {t0}, v8
    v_xor_b32 v9, {vN}, {vG}
    v_lshlrev_b32 v9, 4, v9
    v_lshl_add_u32 v9, {vN}, 8, v9
    v_add_u32 v9, {t2}, v9
    v_xor_b32 v10, 64, v9
    v_xor_b32 v11, 128, v9
    v_xor_b32 v12, 192, v9
    ds_write_b128 v8, {V(D1,4)}
    ds_write_b128 v8, {V(D2,4)} offset:1024
    s_waitcnt vmcnt(0)
    ''')
    for t in range(4): g(f'ds_read_b128 {V(WUKF+4*t,4)}, v{9+t}')
    g(f'''
    v_lshlrev_b32 v8, 2, v0
    v_add_u32 v8, {L_QA}, v8
    v_bfe_u32 v13, v0, 6, 2
    v_mul_u32_u24 v13, 320, v13
    v_bfe_u32 v14, v0, 2, 4
    v_lshl_add_u32 v13, v14, 4, v13
    v_lshrrev_b32 v14, 8, v0
    v_lshl_add_u32 v13, v14, 3, v13
    v_and_b32 v14, 3, v0
    v_lshl_add_u32 v13, v14, 1, v13
    v_and_b32 v14, 3, {vN}
    v_mul_u32_u24 v14, 320, v14
    v_lshl_add_u32 v14, {vG}, 4, v14
    s_waitcnt lgkmcnt(0)
    s_barrier
    ''')
    for k in range(4): g(f'ds_read2st64_b32 {V(16+2*k,2)}, v8 offset0:{16*k} offset1:{16*k+8}')
    g(f'''
    s_lshl_b32 {t0}, {sH}, 10
    s_lshl_b32 {t1}, {sCQ}, 8
    s_add_u32 {t0}, {t0}, {t1}
    s_lshl_b32 {t1}, {sW}, 5
    s_add_u32 {t0}, {t0}, {t1}
    s_add_u32 {t0}, {t0}, {WS_QABS}
    v_and_b32 v15, 3, {vN}
    v_lshlrev_b32 v15, 15, v15
    v_lshl_add_u32 v15, {vG}, 3, v15
    v_add_u32 v15, {t0}, v15
    s_waitcnt lgkmcnt(2)
    v_add_f32 v16, v16, v17
    v_add_f32 v18, v18, v19
    s_waitcnt lgkmcnt(0)
    v_add_f32 v20, v20, v21
    v_add_f32 v22, v22, v23
    v_add_f32 v16, v16, v18
    v_add_f32 v20, v20, v22
    v_add_f32 v16, v16, v20
    v_cvt_pk_bf16_f32 v16, v16, v16
    ds_write_b16 v13, v16 offset:{L_Q & 0xffff}
    ''')
    g.L.insert(len(g.L)-1, f'    v_add_u32 v13, {L_Q & ~0xffff}, v13')
    g(f'''
    v_add_u32 v14, {L_Q & ~0xffff}, v14
    s_waitcnt lgkmcnt(0)
    s_barrier
    ''')
    for t in range(4): g(f'ds_read_b128 {V(QF+4*t,4)}, v14 offset:{(L_Q & 0xffff) + 64*t}')
    for t in range(4):
        g(f's_waitcnt lgkmcnt({3-t})')
        g(f'{MFMA} {V(DQ,4)}, {V(WUKF+4*t,4)}, {V(QF+4*t,4)}, {V(DQ,4) if t else 0}')
    g(f'''
    s_mov_b32 s44, 0x000f000f
    s_mov_b32 s45, 0x000f000f
    v_cvt_pk_bf16_f32 v16, {V(DQ)}, {V(DQ+1)}
    v_cvt_pk_bf16_f32 v17, {V(DQ+2)}, {V(DQ+3)}
    s_mov_b64 exec, {sM}
    global_store_dwordx2 v15, v[16:17], {pWS} sc1
    s_mov_b64 exec, -1
    ''')
    g.stamp(4)
    g(f'''
    s_cmp_ge_u32 {sW}, 4
    s_cbranch_scc1 L_comm
    ''')
    ckv_dma(g, rev=True)
    g('s_branch L_loader_tail')
    g(f'''
    L_nonp:
    s_cmp_ge_u32 {sW}, 4
    s_cbranch_scc1 L_n_comm
    ''')
    ckv_dma(g, rev=False)
    g(f'''
    s_waitcnt lgkmcnt(0)
    s_mul_i32 {sTAG}, {sTAG}, 0x19660d
    s_add_u32 {sTAG}, {sTAG}, 0x3c6ef35f
    L_loader_tail:
    ''')
    wuv_stage(g)
    g.stamp(5)
    g(f'''
    s_branch L_b0a
    L_n_comm:
    s_waitcnt lgkmcnt(0)
    s_mul_i32 {sTAG}, {sTAG}, 0x19660d
    s_add_u32 {sTAG}, {sTAG}, 0x3c6ef35f
    s_cmp_lg_u32 {sW}, 7
    s_cbranch_scc1 L_comm
    s_lshl_b32 {t0}, {sX}, 4
    s_lshr_b32 {t1}, {sR}, 1
    s_add_u32 {t0}, {t0}, {t1}
    s_mul_i32 {t1}, {t0}, {CLR_PER}
    s_add_u32 {t1}, {t1}, {WS_CLR}
    v_lshlrev_b32 v8, 4, {vL}
    v_add_u32 v8, {t1}, v8
    v_mov_b32 v12, -1
    v_mov_b32 v13, -1
    v_mov_b32 v14, -1
    v_mov_b32 v15, -1
    ''')
    for i in range(CLR_PER // 1024):
        if i and i % 4 == 0: g('v_add_u32 v8, 0x1000, v8')
        g(f'global_store_dwordx4 v8, v[12:15], {pWS} offset:{(i % 4)*1024} sc1')
    g(f'''
    s_lshl_b32 {t0}, {t0}, 3
    s_add_u32 {t0}, {t0}, {WS_FLAGN}
    v_mov_b32 v9, {t0}
    v_mov_b32 v10, {sTAG}
    v_mov_b32 v11, {sTAG}
    s_mov_b64 exec, 1
    s_waitcnt vmcnt(0)
    global_store_dwordx2 v9, v[10:11], {pWS} sc1
    s_mov_b64 exec, -1
    ''')
    g.stamp(1)
    GQ = 128
    g(f'''
    L_comm:
    s_lshl_b32 {t0}, {sHH}, 9
    s_add_u32 {t0}, {t0}, {WS_FLAGP}
    v_lshlrev_b32 v8, 3, {vL}
    v_add_u32 v8, {t0}, v8
    s_lshl_b32 {t0}, {sB}, 15
    s_lshl_b32 {t1}, {sHH}, 14
    s_add_u32 {t0}, {t0}, {t1}
    s_and_b32 {t2}, {sW}, 3
    s_lshl_b32 {t1}, {t2}, 12
    s_add_u32 {t0}, {t0}, {t1}
    s_add_u32 {t0}, {t0}, {WS_QABS}
    v_lshlrev_b32 v12, 4, {vL}
    v_add_u32 v9, {t0}, v12
    s_lshl_b32 {t0}, {t2}, 6
    v_xor_b32 v10, {t0}, v12
    s_add_u32 {t1}, {t1}, {L_QA}
    v_add_u32 v10, {t1}, v10
    v_xor_b32 v11, 16, v10
    v_add_u32 v24, {WS_FLAGN}, v12
    v_xor_b32 v12, 32, v10
    v_xor_b32 v13, 48, v10
    ''')
    lab = poll_begin(g, 'pf')
    g(f'''
    global_load_dwordx2 v[14:15], v8, {pWS} sc1
    s_waitcnt vmcnt(0)
    v_cmp_ne_u32 vcc, {sTAG}, v14
    ''')
    poll_end(g, lab)
    g.stamp(5)
    lab = poll_begin(g, 'pq')
    for j in range(4): g(f'global_load_dwordx4 {V(GQ+4*j,4)}, v9, {pWS} offset:{j*1024} sc1')
    g('s_waitcnt vmcnt(0)')
    check_sent(g, 'v14', [V(GQ+k) for k in range(16)])
    poll_end(g, lab)
    for j in range(4): g(f'ds_write_b128 v{10+j}, {V(GQ+4*j,4)} offset:{j*1024}')
    g(f'global_load_dwordx4 v[20:23], v24, {pWS} sc1')
    wuv_stage(g)
    g('s_waitcnt lgkmcnt(0)')
    QFR, SFR, SA, PF, OA, LA = 64, 128, 192, 196, 212, 228
    AQ, AS, AV = 26, 30, 34
    g(f'''
    L_b0a:
    v_xor_b32 v8, {vN}, {vG}
    v_lshlrev_b32 v8, 4, v8
    v_lshl_add_u32 v8, {vN}, 10, v8
    v_add_u32 {V(AQ)}, {L_QA}, v8
    v_xor_b32 {V(AQ+1)}, 64, {V(AQ)}
    v_xor_b32 {V(AQ+2)}, 128, {V(AQ)}
    v_xor_b32 {V(AQ+3)}, 192, {V(AQ)}
    s_barrier
    ''')
    g.stamp(6)
    for t in range(16): g(f'ds_read_b128 {V(QFR+4*t,4)}, {V(AQ+(t&3))} offset:{256*(t>>2)}')
    g(f'''
    v_and_b32 v8, 8, {vN}
    v_and_b32 v9, 3, {vN}
    v_lshl_add_u32 v8, v9, 1, v8
    v_bfe_u32 v9, {vN}, 2, 1
    v_add_u32 v8, v8, v9
    v_lshlrev_b32 v9, 3, v9
    v_xor_b32 v9, v9, v8
    v_xor_b32 v9, v9, {vG}
    v_lshlrev_b32 v9, 4, v9
    v_lshl_add_u32 v9, v8, 10, v9
    s_lshl_b32 {t0}, {sW}, 14
    v_add_u32 {V(AS)}, {t0}, v9
    v_xor_b32 {V(AS+1)}, 64, {V(AS)}
    v_xor_b32 {V(AS+2)}, 128, {V(AS)}
    v_xor_b32 {V(AS+3)}, 192, {V(AS)}
    v_bfe_u32 v8, {vL}, 2, 2
    v_lshlrev_b32 v8, 1, v8
    v_lshl_add_u32 v9, {vG}, 3, v8
    v_and_b32 v10, 15, v9
    v_bfe_u32 v11, {vL}, 1, 1
    s_lshl_b32 {t0}, {sW}, 3
    v_add_u32 v11, {t0}, v11
    v_xor_b32 v10, v10, v11
    v_lshlrev_b32 v10, 4, v10
    v_lshl_add_u32 v10, v9, 10, v10
    v_and_b32 v11, 1, {vL}
    v_lshl_add_u32 v10, v11, 3, v10
    ''')
    for tau in range(4):
        for a in range(2):
            k = 2*tau + a
            g(f'v_xor_b32 {V(AV+k)}, {hex(((2*tau) ^ (9*a)) << 4)}, v10')
            g(f'v_xor_b32 {V(AV+8+k)}, {hex((((2*tau) ^ (9*a)) << 4) | 0x10000)}, v10')
    aMXw, aMXr, aPLw, aPLr, aPT, aSM = 50, 51, 52, 53, 54, 55
    g(f'''
    s_lshl_b32 {t0}, {sW}, 2
    s_add_u32 {t0}, {t0}, {L_MX}
    v_lshlrev_b32 v8, 5, {vN}
    v_add_u32 {V(aMXw)}, {t0}, v8
    v_add_u32 {V(aMXr)}, {L_MX}, v8
    v_mul_u32_u24 v8, 272, {vN}
    v_add_u32 v8, {L_PL}, v8
    v_lshl_add_u32 {V(aPLr)}, {vG}, 4, v8
    v_lshl_add_u32 v8, {vG}, 3, v8
    s_lshl_b32 {t0}, {sW}, 5
    v_add_u32 {V(aPLw)}, {t0}, v8
    s_lshl_b32 {t0}, {sHH}, 21
    s_lshr_b32 {t1}, {sB}, 1
    s_lshl_b32 {t1}, {t1}, 16
    s_add_u32 {t0}, {t0}, {t1}
    s_lshr_b32 {t1}, {sW}, 1
    s_lshl_b32 {t1}, {t1}, 14
    s_add_u32 {t0}, {t0}, {t1}
    s_and_b32 {t1}, {sB}, 1
    s_lshl_b32 {t1}, {t1}, 13
    s_add_u32 {t0}, {t0}, {t1}
    s_lshl_b32 {t1}, {sS}, 8
    s_add_u32 {t0}, {t0}, {t1}
    s_and_b32 {t1}, {sW}, 1
    s_lshl_b32 {t1}, {t1}, 7
    s_add_u32 {t0}, {t0}, {t1}
    s_add_u32 {t0}, {t0}, {WS_PART}
    v_lshlrev_b32 v8, 19, {vG}
    v_lshl_add_u32 v8, {vN}, 3, v8
    v_add_u32 {V(aPT)}, {t0}, v8
    s_lshl_b32 {t0}, {sHH}, 13
    s_lshl_b32 {t1}, {sB}, 7
    s_add_u32 {t0}, {t0}, {t1}
    s_lshl_b32 {t1}, {sS}, 2
    s_add_u32 {t0}, {t0}, {t1}
    s_add_u32 {t3}, {t0}, {WS_STATM}
    v_lshlrev_b32 v8, 9, {vN}
    v_add_u32 {V(aSM)}, {t3}, v8
    s_cmp_ge_u32 {sW}, 4
    s_cbranch_scc1 L_b0b
    s_waitcnt vmcnt(4)
    L_b0b:
    s_barrier
    ''')
    g.stamp(7)
    for t in range(16): g(f'ds_read_b128 {V(SFR+4*t,4)}, {V(AS+(t&3))} offset:{256*(t>>2)}')
    for t in range(16):
        g(f's_waitcnt lgkmcnt({15-t})')
        g(f'{MFMA} {V(SA,4)}, {V(SFR+4*t,4)}, {V(QFR+4*t,4)}, {V(SA,4) if t else 0}')
    g(f'''
    s_mov_b32 {t2}, {hex(f2i(SCALE))}
    v_max_f32 v8, {V(SA)}, {V(SA+1)}
    v_max3_f32 v8, v8, {V(SA+2)}, {V(SA+3)}
    v_mov_b32 v9, v8
    v_permlane16_swap_b32 v9, v8
    v_max_f32 v8, v8, v9
    v_mov_b32 v9, v8
    v_permlane32_swap_b32 v9, v8
    v_max_f32 v8, v8, v9
    ds_write_b32 {V(aMXw)}, v8
    s_waitcnt lgkmcnt(0)
    s_barrier
    ''')
    g.stamp(8)
    def trd(ks, tau, a):
        return f'ds_read_b64_tr_b16 {V(QFR + (ks*4+tau)*4 + 2*a, 2)}, {V(AV + 8*(ks>>1) + 2*tau + a)} offset:{a*1024 + (ks&1)*32768}'
    trs = [(ks, tau, a) for ks in range(4) for tau in range(4) for a in range(2)]
    g(f'''
    ds_read_b128 v[12:15], {V(aMXr)}
    ds_read_b128 v[16:19], {V(aMXr)} offset:16
    ''')
    for x in trs[:12]: g(trd(*x))
    g(f'''
    s_waitcnt lgkmcnt(12)
    v_max3_f32 v8, v12, v13, v14
    v_max3_f32 v9, v15, v16, v17
    v_max3_f32 v8, v8, v18, v19
    v_max_f32 v8, v8, v9
    v_mul_f32 v8, {t2}, v8
    v_fma_f32 v12, {V(SA)}, {t2}, -v8
    v_fma_f32 v13, {V(SA+1)}, {t2}, -v8
    v_fma_f32 v14, {V(SA+2)}, {t2}, -v8
    v_fma_f32 v15, {V(SA+3)}, {t2}, -v8
    v_exp_f32 v12, v12
    v_exp_f32 v13, v13
    v_exp_f32 v14, v14
    v_exp_f32 v15, v15
    v_cvt_pk_bf16_f32 v12, v12, v13
    v_cvt_pk_bf16_f32 v13, v14, v15
    ds_write_b64 {V(aPLw)}, v[12:13]
    s_cmp_lt_u32 {sW}, 4
    s_cbranch_scc1 L_b2
    s_mov_b32 {sCNT}, 0
    s_waitcnt vmcnt(4)
    L_fn:
    v_cmp_ne_u32 vcc, {sTAG}, v20
    v_cmp_ne_u32 {sM}, {sTAG}, v22
    s_or_b64 vcc, vcc, {sM}
    s_cbranch_vccz L_b2
    s_add_u32 {sCNT}, {sCNT}, 1
    s_cmp_ge_u32 {sCNT}, {o['maxpoll']}
    s_cbranch_scc1 L_b2
    global_load_dwordx4 v[20:23], v24, {pWS} sc1
    s_waitcnt vmcnt(0)
    s_branch L_fn
    L_b2:
    s_waitcnt lgkmcnt(0)
    s_barrier
    ''')
    g.stamp(9)
    seq = [('p', k) for k in range(4)] + [('t', x) for x in trs[12:]]
    issued = 0
    def issue(upto):
        nonlocal issued
        while issued < min(upto, len(seq)):
            kind, x = seq[issued]
            g(f'ds_read_b128 {V(PF+4*x,4)}, {V(aPLr)} offset:{64*x}' if kind == 'p' else trd(*x))
            issued += 1
    issue(14)
    g(f'''
    s_cmp_lg_u32 {sW}, 0
    s_cbranch_scc1 L_nosm
    s_mov_b64 exec, 0xffff
    global_store_dword {V(aSM)}, v8, {pWS} sc1
    s_mov_b64 exec, -1
    L_nosm:
    ''')
    lastwait = None
    for ks in range(4):
        for tau in range(4):
            need = seq.index(('p', ks))
            if (ks, tau, 1) in trs[12:]: need = max(need, seq.index(('t', (ks, tau, 1))))
            cnt = issued - 1 - need
            if lastwait is None or need > lastwait:
                g(f's_waitcnt lgkmcnt({cnt})'); lastwait = need
            g(f'{MFMA} {V(OA+4*tau,4)}, {V(PF+4*ks,4)}, {V(QFR+(ks*4+tau)*4,4)}, {V(OA+4*tau,4) if ks else 0}')
            issue(min(len(seq), lastwait + 1 + 14))
    g(f'''
    s_cmp_lg_u32 {sW}, 7
    s_cbranch_scc1 L_pub
    v_mov_b32 v12, 0x3f803f80
    v_mov_b32 v13, 0x3f803f80
    v_mov_b32 v14, 0x3f803f80
    v_mov_b32 v15, 0x3f803f80
    ''')
    for ks in range(4): g(f'{MFMA} {V(LA,4)}, {V(PF+4*ks,4)}, v[12:15], {V(LA,4) if ks else 0}')
    g('L_pub:')
    for i in range(4):
        g(f'v_cvt_pk_bf16_f32 v{12+2*i}, {V(OA+i)}, {V(OA+4+i)}')
        g(f'v_cvt_pk_bf16_f32 v{13+2*i}, {V(OA+8+i)}, {V(OA+12+i)}')
        if i: g(f'v_add_u32 {V(aPT)}, 0x20000, {V(aPT)}')
        g(f'global_store_dwordx2 {V(aPT)}, {V(12+2*i,2)}, {pWS} sc1')
    g(f'''
    s_cmp_lg_u32 {sW}, 7
    s_cbranch_scc1 L_nosl
    v_cmp_eq_u32 vcc, 1, {vN}
    v_cndmask_b32 v8, {V(LA)}, {V(LA+1)}, vcc
    v_cmp_eq_u32 vcc, 2, {vN}
    v_cndmask_b32 v8, v8, {V(LA+2)}, vcc
    v_cmp_eq_u32 vcc, 3, {vN}
    v_cndmask_b32 v8, v8, {V(LA+3)}, vcc
    v_lshl_add_u32 v9, {vG}, 2, {vN}
    v_lshlrev_b32 v9, 9, v9
    s_add_u32 {t3}, {t3}, {WS_STATL - WS_STATM}
    v_add_u32 v9, {t3}, v9
    s_mov_b32 s44, 0x000f000f
    s_mov_b32 s45, 0x000f000f
    s_mov_b64 exec, {sM}
    global_store_dword v9, v8, {pWS} sc1
    s_mov_b64 exec, -1
    L_nosl:
    ''')
    g.stamp(10)
    WF, XD, A0, XA, CF = 64, 80, 88, 96, 100
    g(f'''
    s_mul_i32 {t0}, {sW}, {16*288}
    v_mul_u32_u24 v8, 288, {vG}
    v_lshl_add_u32 v8, {vN}, 4, v8
    v_add_u32 v8, {t0}, v8
    s_barrier
    s_waitcnt vmcnt(4)
    ''')
    for j in range(4): g(f'ds_write_b128 v8, {V(ST+4*j,4)} offset:{L_WV + j*1152}')
    aST, aDT, aCCw, aCCr, aCT = 26, 27, 28, 29, 30
    g(f'''
    v_bfe_u32 v9, {vL}, 2, 2
    v_lshl_add_u32 v9, {vG}, 3, v9
    v_mul_u32_u24 v9, 288, v9
    v_and_b32 v10, 3, {vL}
    v_lshl_add_u32 v9, v10, 3, v9
    s_lshl_b32 {t0}, {sW}, 5
    v_add_u32 v9, {t0}, v9
    s_bfe_u32 {t0}, {sR}, 0x10002
    s_lshl_b32 {t0}, {t0}, 1
    s_lshr_b32 {t1}, {sW}, 2
    s_add_u32 {t0}, {t0}, {t1}
    s_lshl_b32 {t0}, {t0}, 7
    s_lshl_b32 {t1}, {sH}, 9
    s_add_u32 {t0}, {t0}, {t1}
    s_add_u32 {t0}, {t0}, {WS_STATM}
    s_and_b32 {t2}, {sW}, 3
    s_lshl_b32 {t1}, {t2}, 2
    v_add3_u32 v10, {vN}, {vG}, {t1}
    v_and_b32 v10, 15, v10
    v_lshlrev_b32 v10, 3, v10
    v_add_u32 {V(aST)}, {t0}, v10
    s_lshl_b32 {t0}, {sH}, 17
    s_and_b32 {t1}, {sR}, 7
    s_lshl_b32 {t1}, {t1}, 14
    s_add_u32 {t0}, {t0}, {t1}
    s_lshl_b32 {t1}, {sW}, 11
    s_add_u32 {t0}, {t0}, {t1}
    s_add_u32 {t0}, {t0}, {WS_PART}
    v_lshlrev_b32 v10, 9, {vG}
    v_lshl_add_u32 v10, {vN}, 4, v10
    v_add_u32 {V(aDT)}, {t0}, v10
    s_waitcnt lgkmcnt(0)
    s_barrier
    ''')
    for t in range(4):
        for a in range(2):
            g(f'ds_read_b64_tr_b16 {V(WF+4*t+2*a,2)}, v9 offset:{L_WV + t*9216 + a*1152}')
    g(f'''
    s_mul_i32 {t0}, {sW}, 272
    s_add_u32 {t0}, {t0}, {L_CC}
    v_lshlrev_b32 v10, 4, {vN}
    v_lshl_add_u32 v10, {vG}, 3, v10
    v_add_u32 {V(aCCw)}, {t0}, v10
    v_and_b32 v10, 7, {vN}
    v_mul_u32_u24 v11, 272, v10
    v_lshl_add_u32 v11, {vG}, 4, v11
    v_add_u32 {V(aCCr)}, {L_CC}, v11
    s_lshl_b32 {t0}, {sH}, 12
    s_lshr_b32 {t1}, {sW}, 1
    s_lshl_b32 {t1}, {t1}, 10
    s_add_u32 {t0}, {t0}, {t1}
    s_bfe_u32 {t1}, {sR}, 0x10002
    s_lshl_b32 {t1}, {t1}, 9
    s_add_u32 {t0}, {t0}, {t1}
    s_and_b32 {t1}, {sW}, 1
    s_lshl_b32 {t1}, {t1}, 7
    s_add_u32 {t0}, {t0}, {t1}
    s_and_b32 {t1}, {sR}, 3
    s_lshl_b32 {t1}, {t1}, 4
    s_add_u32 {t0}, {t0}, {t1}
    s_add_u32 {t0}, {t0}, {WS_CTX}
    v_lshlrev_b32 v11, 1, v10
    v_lshrrev_b32 v12, 3, {vN}
    v_lshl_add_u32 v11, v12, 6, v11
    v_and_b32 v12, 1, {vG}
    v_lshl_add_u32 v11, v12, 8, v11
    v_add_u32 {V(aCT)}, {t0}, v11
    v_lshrrev_b32 v10, 1, v10
    v_cmp_eq_u32 vcc, 0, v10
    v_cndmask_b32 v32, 0, -1, vcc
    v_cmp_eq_u32 vcc, 1, v10
    v_cndmask_b32 v33, 0, -1, vcc
    v_cmp_eq_u32 vcc, 2, v10
    v_cndmask_b32 v34, 0, -1, vcc
    v_cmp_eq_u32 vcc, 3, v10
    v_cndmask_b32 v35, 0, -1, vcc
    v_and_b32 v10, 1, {vN}
    v_cmp_eq_u32 vcc, 1, v10
    v_mov_b32 v11, 0x0c0c0100
    v_mov_b32 v12, 0x01000c0c
    v_cndmask_b32 v36, v11, v12, vcc
    v_mov_b32 v11, 0x0c0c0302
    v_mov_b32 v12, 0x03020c0c
    v_cndmask_b32 v37, v11, v12, vcc
    ''')
    lab = poll_begin(g, 'pm')
    g(f'''
    global_load_dwordx2 v[12:13], {V(aST)}, {pWS} sc1
    s_waitcnt vmcnt(0)
    ''')
    check_sent(g, 'v14', ['v12', 'v13'])
    poll_end(g, lab)
    g.stamp(11)
    lab = poll_begin(g, 'px')
    g(f'''
    global_load_dwordx4 {V(XD,4)}, {V(aDT)}, {pWS} sc1
    global_load_dwordx4 {V(XD+4,4)}, {V(aDT)}, {pWS} offset:256 sc1
    v_add_u32 v10, {WS_STATL - WS_STATM}, {V(aST)}
    global_load_dwordx2 v[18:19], v10, {pWS} sc1
    s_cmp_lg_u32 {sCNT}, 0
    s_cbranch_scc1 {lab}_w
    v_max_f32 v14, v12, v13
    ''')
    allreduce(g, 'v_max_f32', ['v14'], None, full=False)
    g(f'''
    v_sub_f32 v12, v12, v14
    v_sub_f32 v13, v13, v14
    v_exp_f32 v12, v12
    v_exp_f32 v13, v13
    v_cvt_pk_bf16_f32 v12, v12, v13
    v_lshlrev_b32 v16, 16, v12
    v_and_b32 v17, 0xffff0000, v12
    v_mov_b32_dpp v13, v12 row_newbcast:0 row_mask:0xf bank_mask:0xf
    v_perm_b32 v14, v13, v13, v36
    v_perm_b32 v15, v13, v13, v37
    ''')
    for j in range(4):
        g(f'v_and_b32 {V(A0+j)}, v{32+j}, v14')
        g(f'v_and_b32 {V(A0+4+j)}, v{32+j}, v15')
    g(f'''
    {lab}_w:
    s_waitcnt vmcnt(0)
    ''')
    check_sent(g, 'v14', [V(XD+k) for k in range(8)] + ['v18', 'v19'])
    poll_end(g, lab)
    g.stamp(12)
    g(f'''
    {MFMA} {V(XA,4)}, {V(A0,4)}, {V(XD,4)}, 0
    {MFMA} {V(XA,4)}, {V(A0+4,4)}, {V(XD+4,4)}, {V(XA,4)}
    v_mul_f32 v18, v16, v18
    v_fmac_f32 v18, v17, v19
    ''')
    allreduce(g, 'v_add_f32', ['v18'], None, full=False)
    g(f'''
    v_rcp_f32 v18, v18
    s_mov_b32 s44, -1
    s_mov_b32 s45, 0
    v_mul_f32 v12, v18, {V(XA)}
    v_mul_f32 v13, v18, {V(XA+1)}
    v_mul_f32 v14, v18, {V(XA+2)}
    v_mul_f32 v15, v18, {V(XA+3)}
    v_cvt_pk_bf16_f32 v12, v12, v13
    v_cvt_pk_bf16_f32 v13, v14, v15
    s_mov_b64 exec, {sM}
    ds_write_b64 {V(aCCw)}, v[12:13]
    s_mov_b64 exec, -1
    s_waitcnt lgkmcnt(0)
    s_barrier
    ''')
    for t in range(4): g(f'ds_read_b128 {V(CF+4*t,4)}, {V(aCCr)} offset:{64*t}')
    for t in range(4):
        g(f's_waitcnt lgkmcnt({3-t})')
        g(f'{MFMA} {V(XA,4)}, {V(CF+4*t,4)}, {V(WF+4*t,4)}, {V(XA,4) if t else 0}')
    g(f'''
    s_mov_b32 s44, 0x55555555
    v_add_f32 v12, {V(XA)}, {V(XA+1)}
    v_add_f32 v13, {V(XA+2)}, {V(XA+3)}
    v_add_f32 v12, v12, v13
    v_mov_b32_dpp v13, v12 quad_perm:[1,0,3,2] row_mask:0xf bank_mask:0xf
    v_cvt_pk_bf16_f32 v12, v12, v13
    s_mov_b64 exec, {sM}
    global_store_dword {V(aCT)}, v12, {pWS} sc1
    s_mov_b64 exec, -1
    ''')
    g.stamp(13)
    g(f'''
    s_cmp_eq_u32 {sHH}, 1
    s_cbranch_scc1 L_odd
    s_cmp_ge_u32 {sR}, 16
    s_cbranch_scc1 L_y
    s_cmp_ge_u32 {sR}, 4
    s_cbranch_scc1 L_end
    s_lshr_b32 {t3}, {sR}, 1
    s_add_u32 {t3}, {t3}, 12
    s_branch L_f1
    L_odd:
    s_lshr_b32 {t3}, {sR}, 1
    s_cmp_lt_u32 {sR}, 8
    s_cbranch_scc1 L_f2
    s_sub_u32 {t3}, {t3}, 4
    s_branch L_f1
    ''')
    BF, YD, YA = 64, 96, 104
    g(f'''
    L_y:
    s_lshr_b32 {t3}, {sR}, 1
    s_sub_u32 {t3}, {t3}, 8
    s_lshl_b32 {t0}, {t3}, 19
    s_lshl_b32 {t1}, {sW}, 16
    s_add_u32 {t0}, {t0}, {t1}
    s_lshl_b32 {t1}, {sX}, 7
    s_add_u32 {t0}, {t0}, {t1}
    v_lshrrev_b32 v8, 3, {vL}
    v_and_b32 v9, 2, v8
    v_and_b32 v10, 7, {vL}
    v_xor_b32 v9, v9, v10
    v_lshlrev_b32 v9, 4, v9
    v_lshl_add_u32 v8, v8, 10, v9
    v_add_u32 v8, {t0}, v8
    s_lshl_b32 {t2}, {sW}, 13
    s_add_u32 {t2}, {t2}, {L_ROLE}
    ''')
    for i in range(8):
        g(f's_add_u32 m0, {t2}, {i*1024}')
        g(f'v_xor_b32 v9, {hex((i << 13) | ((i & 1) << 6))}, v8')
        g(f'global_load_lds_dwordx4 v9, {pWO} {nt}')
    g(f'''
    v_bfe_u32 v8, {vL}, 2, 2
    v_and_b32 v9, 2, v8
    v_and_b32 v10, 1, {vG}
    v_lshl_add_u32 v9, v10, 2, v9
    v_bfe_u32 v10, {vL}, 1, 1
    v_xor_b32 v9, v9, v10
    v_lshlrev_b32 v9, 4, v9
    v_lshl_add_u32 v8, {vG}, 3, v8
    v_lshl_add_u32 v9, v8, 7, v9
    v_and_b32 v10, 1, {vL}
    v_lshl_add_u32 v9, v10, 3, v9
    v_add_u32 v12, {t2}, v9
    v_xor_b32 v13, 32, v12
    v_xor_b32 v14, 64, v12
    v_xor_b32 v15, 96, v12
    s_lshl_b32 {t0}, {t3}, 14
    s_lshl_b32 {t1}, {sW}, 11
    s_add_u32 {t0}, {t0}, {t1}
    s_add_u32 {t0}, {t0}, {WS_CTX}
    v_lshrrev_b32 v8, 2, {vN}
    v_lshlrev_b32 v8, 8, v8
    v_lshl_add_u32 v8, {vG}, 6, v8
    v_and_b32 v9, 3, {vN}
    v_lshl_add_u32 v8, v9, 4, v8
    v_add_u32 v26, {t0}, v8
    s_lshl_b32 {t0}, {sW}, 10
    s_add_u32 {t0}, {t0}, {L_RED}
    v_lshlrev_b32 v8, 4, {vL}
    v_add_u32 v27, {t0}, v8
    s_lshl_b32 {t0}, {sW}, 8
    s_add_u32 {t0}, {t0}, {L_RED}
    v_lshlrev_b32 v8, 4, {vN}
    v_lshl_add_u32 v8, {vG}, 2, v8
    v_add_u32 v28, {t0}, v8
    s_lshl_b32 {t0}, {sX}, 12
    s_lshl_b32 {t1}, {t3}, 9
    s_add_u32 {t0}, {t0}, {t1}
    s_lshl_b32 {t1}, {sW}, 7
    s_add_u32 {t0}, {t0}, {t1}
    s_add_u32 {t0}, {t0}, {WS_HPART}
    v_lshlrev_b32 v8, 1, {vL}
    v_add_u32 v29, {t0}, v8
    s_waitcnt vmcnt(0)
    ''')
    for T in range(2):
        for tau in range(4):
            for a in range(2):
                g(f'ds_read_b64_tr_b16 {V(BF+(T*4+tau)*4+2*a,2)}, v{12+tau} offset:{T*4096 + a*512}')
    lab = poll_begin(g, 'py')
    g(f'''
    global_load_dwordx4 {V(YD,4)}, v26, {pWS} sc1
    global_load_dwordx4 {V(YD+4,4)}, v26, {pWS} offset:1024 sc1
    s_waitcnt vmcnt(0)
    ''')
    check_sent(g, 'v8', [V(YD+k) for k in range(8)])
    poll_end(g, lab)
    g.stamp(14)
    g('s_waitcnt lgkmcnt(0)')
    for T in range(2):
        for tau in range(4):
            g(f'{MFMA} {V(YA+4*tau,4)}, {V(YD+4*T,4)}, {V(BF+(T*4+tau)*4,4)}, {V(YA+4*tau,4) if T else 0}')
    for tau in range(4):
        g(f'v_add_f32 v{8+tau}, {V(YA+4*tau)}, {V(YA+4*tau+1)}')
        g(f'v_add_f32 v{12+tau}, {V(YA+4*tau+2)}, {V(YA+4*tau+3)}')
    for tau in range(4): g(f'v_add_f32 v{8+tau}, v{8+tau}, v{12+tau}')
    g(f'''
    ds_write_b128 v27, v[8:11]
    s_waitcnt lgkmcnt(0)
    s_barrier
    s_cmp_ge_u32 {sW}, 4
    s_cbranch_scc1 L_end
    ''')
    for k in range(4): g(f'ds_read2st64_b32 {V(8+2*k,2)}, v28 offset0:{8*k} offset1:{8*k+4}')
    g(f'''
    s_mov_b32 s44, 0x55555555
    s_mov_b32 s45, 0x55555555
    s_waitcnt lgkmcnt(2)
    v_add_f32 v8, v8, v9
    v_add_f32 v10, v10, v11
    s_waitcnt lgkmcnt(0)
    v_add_f32 v12, v12, v13
    v_add_f32 v14, v14, v15
    v_add_f32 v8, v8, v10
    v_add_f32 v12, v12, v14
    v_add_f32 v8, v8, v12
    v_mov_b32_dpp v9, v8 quad_perm:[1,0,3,2] row_mask:0xf bank_mask:0xf
    v_cvt_pk_bf16_f32 v8, v8, v9
    s_mov_b64 exec, {sM}
    global_store_dword v29, v8, {pWS} sc1
    s_mov_b64 exec, -1
    ''')
    g.stamp(15)
    g('s_branch L_end')
    WB, HD, SA_, SB_, H0, AF, DG = 64, 96, 128, 132, 136, 144, 172
    def h_prep():
        g(f'''
        s_lshl_b32 {t0}, {sW}, 10
        v_lshrrev_b32 v8, 1, {vG}
        v_lshlrev_b32 v8, 8, v8
        v_lshl_add_u32 v8, {vN}, 4, v8
        v_and_b32 v9, 1, {vG}
        v_lshl_add_u32 v30, v9, 3, v8
        v_add_u32 v8, {t0}, v30
        global_load_dwordx2 v[16:17], v8, {pX}
        global_load_dwordx2 v[18:19], v8, {pX} offset:512
        v_and_b32 v9, 1, {vN}
        v_cmp_eq_u32 vcc, 1, v9
        v_mov_b32 v10, 0x3f80
        v_mov_b32 v11, 0x3f800000
        v_cndmask_b32 v10, v10, v11, vcc
        v_lshrrev_b32 v9, 1, {vN}
        ''')
        for j in range(8):
            g(f'v_cmp_eq_u32 vcc, {j}, v9')
            g(f'v_cndmask_b32 {V(SA_+j)}, 0, v10, vcc')
        g(f'''
        s_lshl_b32 {t0}, {sW}, 7
        s_add_u32 {t0}, {t0}, {WS_HPART}
        v_lshrrev_b32 v8, 3, {vN}
        v_lshlrev_b32 v8, 12, v8
        v_lshl_add_u32 v8, {vG}, 9, v8
        v_and_b32 v9, 7, {vN}
        v_lshl_add_u32 v8, v9, 4, v8
        v_add_u32 v26, {t0}, v8
        v_add_u32 v27, 0x2000, v26
        v_add_u32 v28, 0x4000, v26
        v_add_u32 v29, 0x6000, v26
        s_waitcnt vmcnt(0)
        ''')
        for al in range(2):
            for k in range(2):
                g(f'v_lshlrev_b32 {V(H0+4*al+2*k)}, 16, v{16+2*al+k}')
                g(f'v_and_b32 {V(H0+4*al+2*k+1)}, 0xffff0000, v{16+2*al+k}')
    def h_gather():
        lab = poll_begin(g, 'ph')
        for tau in range(4):
            for u in range(2):
                g(f'global_load_dwordx4 {V(HD+8*tau+4*u,4)}, v{26+tau}, {pWS} offset:{u*2048} sc1')
        g('s_waitcnt vmcnt(0)')
        check_sent(g, 'v8', [V(HD+k) for k in range(32)])
        poll_end(g, lab)
        for k in range(4):
            for al in range(2):
                tau = 2*al + (k >> 1)
                g(f'{MFMA} {V(H0+4*al,4)}, {V(SA_ + 4*(k>>1),4)}, {V(HD+8*tau+4*(k&1),4)}, {V(H0+4*al,4)}')
    g(f'''
    L_f1:
    s_mul_i32 {t0}, {sX}, 14
    s_add_u32 {t3}, {t3}, {t0}
    s_mul_i32 {t0}, {sW}, {64*3584}
    s_lshl_b32 {t1}, {t3}, 5
    s_add_u32 {t0}, {t0}, {t1}
    v_lshrrev_b32 v8, 1, {vL}
    v_mul_u32_u24 v8, 3584, v8
    v_and_b32 v9, 1, {vL}
    v_lshl_add_u32 v8, v9, 4, v8
    v_add_u32 v8, {t0}, v8
    v_add_u32 v9, {32*3584}, v8
    s_lshl_b32 {t2}, {sW}, 13
    s_add_u32 {t2}, {t2}, {L_ROLE}
    ''')
    for mat in range(2):
        for j in range(2):
            g(f's_add_u32 m0, {t2}, {(mat*2+j)*1024}')
            g(f'global_load_lds_dwordx4 v{8+j}, {pWU if mat else pWG} {nt}')
    g(f'''
    v_bfe_u32 v8, {vL}, 2, 2
    v_lshl_add_u32 v8, {vG}, 3, v8
    v_lshlrev_b32 v8, 5, v8
    v_and_b32 v9, 3, {vL}
    v_lshl_add_u32 v8, v9, 3, v8
    v_add_u32 v31, {t2}, v8
    v_and_b32 v8, 3, {vN}
    v_mul_u32_u24 v8, 1088, v8
    v_lshl_add_u32 v8, {vG}, 4, v8
    s_lshl_b32 {t0}, {sW}, 7
    s_add_u32 {t0}, {t0}, {L_HN}
    v_add_u32 v32, {t0}, v8
    s_lshl_b32 {t0}, {sW}, 9
    s_add_u32 {t0}, {t0}, {L_RED}
    v_lshlrev_b32 v8, 4, {vN}
    v_add_u32 v33, {t0}, v8
    v_lshl_add_u32 v8, {vG}, 2, v8
    v_add_u32 v34, {L_RED}, v8
    s_lshl_b32 {t0}, {t3}, 7
    s_add_u32 {t0}, {t0}, {WS_ACT}
    v_lshrrev_b32 v8, 3, {vN}
    v_lshlrev_b32 v8, 6, v8
    v_lshl_add_u32 v8, {vG}, 4, v8
    v_and_b32 v9, 7, {vN}
    v_lshl_add_u32 v8, v9, 1, v8
    v_add_u32 v35, {t0}, v8
    s_cmp_ge_u32 {sW}, 4
    s_cbranch_scc1 L_f1_w
    ''')
    h_prep()
    g(f'''
    s_mul_i32 {t0}, {sW}, 1088
    s_add_u32 {t0}, {t0}, {L_HN}
    v_add_u32 v30, {t0}, v30
    L_f1_w:
    s_waitcnt vmcnt(0)
    ''')
    for mat in range(2):
        for j in range(2):
            for a in range(2):
                g(f'ds_read_b64_tr_b16 {V(WB+(mat*2+j)*4+2*a,2)}, v31 offset:{(mat*2+j)*1024 + a*128}')
    g(f'''
    s_cmp_ge_u32 {sW}, 4
    s_cbranch_scc1 L_f1_b
    ''')
    h_gather()
    g.stamp(14)
    g(f'''
    v_add_f32 v8, {V(H0)}, {V(H0+1)}
    v_mul_f32 v9, {V(H0)}, {V(H0)}
    v_add_f32 v10, {V(H0+2)}, {V(H0+3)}
    v_fmac_f32 v9, {V(H0+1)}, {V(H0+1)}
    v_add_f32 v11, {V(H0+4)}, {V(H0+5)}
    v_fmac_f32 v9, {V(H0+2)}, {V(H0+2)}
    v_add_f32 v12, {V(H0+6)}, {V(H0+7)}
    v_fmac_f32 v9, {V(H0+3)}, {V(H0+3)}
    v_add_f32 v8, v8, v10
    v_fmac_f32 v9, {V(H0+4)}, {V(H0+4)}
    v_add_f32 v11, v11, v12
    v_fmac_f32 v9, {V(H0+5)}, {V(H0+5)}
    v_add_f32 v8, v8, v11
    v_fmac_f32 v9, {V(H0+6)}, {V(H0+6)}
    v_fmac_f32 v9, {V(H0+7)}, {V(H0+7)}
    ''')
    allreduce(g, 'v_add_f32', ['v8', 'v9'], ['v10', 'v11'])
    g(f'''
    v_mul_f32 v8, {hex(f2i(1/512))}, v8
    v_mul_f32 v9, {hex(f2i(1/512))}, v9
    v_fma_f32 v9, -v8, v8, v9
    v_max_f32 v9, 0, v9
    v_add_f32 v9, {hex(f2i(1e-5))}, v9
    v_rsq_f32 v9, v9
    ''')
    for k in range(8): g(f'v_sub_f32 v{12+k}, {V(H0+k)}, v8')
    for k in range(8): g(f'v_mul_f32 v{12+k}, v{12+k}, v9')
    for k in range(4): g(f'v_cvt_pk_bf16_f32 v{12+k}, v{12+2*k}, v{13+2*k}')
    g(f'''
    ds_write_b64 v30, v[12:13]
    ds_write_b64 v30, v[14:15] offset:512
    L_f1_b:
    s_waitcnt lgkmcnt(0)
    s_barrier
    ds_read_b128 {V(AF,4)}, v32
    ds_read_b128 {V(AF+4,4)}, v32 offset:64
    s_waitcnt lgkmcnt(1)
    {MFMA} {V(DG,4)}, {V(AF,4)}, {V(WB,4)}, 0
    {MFMA} {V(DG+4,4)}, {V(AF,4)}, {V(WB+8,4)}, 0
    s_waitcnt lgkmcnt(0)
    {MFMA} {V(DG,4)}, {V(AF+4,4)}, {V(WB+4,4)}, {V(DG,4)}
    {MFMA} {V(DG+4,4)}, {V(AF+4,4)}, {V(WB+12,4)}, {V(DG+4,4)}
    s_mov_b64 exec, 0xffff
    ds_write_b128 v33, {V(DG,4)}
    ds_write_b128 v33, {V(DG+4,4)} offset:256
    s_mov_b64 exec, -1
    s_waitcnt lgkmcnt(0)
    s_barrier
    s_cmp_lg_u32 {sW}, 0
    s_cbranch_scc1 L_end
    ''')
    for k in range(8): g(f'ds_read2st64_b32 {V(8+2*k,2)}, v34 offset0:{2*k} offset1:{2*k+1}')
    C1 = -2 * 1.4426950408889634 * 0.7978845608028654
    g(f'''
    s_mov_b32 s44, 0x55555555
    s_mov_b32 s45, 0x55555555
    s_mov_b32 {t0}, {hex(f2i(C1*0.044715))}
    v_mov_b32 v24, {hex(f2i(C1))}
    s_waitcnt lgkmcnt(4)
    v_add_f32 v8, v8, v10
    v_add_f32 v9, v9, v11
    v_add_f32 v12, v12, v14
    v_add_f32 v13, v13, v15
    s_waitcnt lgkmcnt(0)
    v_add_f32 v16, v16, v18
    v_add_f32 v20, v20, v22
    v_add_f32 v8, v8, v12
    v_add_f32 v16, v16, v20
    v_add_f32 v17, v17, v19
    v_add_f32 v8, v8, v16
    v_add_f32 v21, v21, v23
    v_mul_f32 v10, v8, v8
    v_add_f32 v9, v9, v13
    v_fma_f32 v10, v10, {t0}, v24
    v_add_f32 v17, v17, v21
    v_mul_f32 v10, v10, v8
    v_add_f32 v9, v9, v17
    v_exp_f32 v10, v10
    v_mul_f32 v8, v8, v9
    v_add_f32 v10, 1.0, v10
    v_rcp_f32 v10, v10
    v_mul_f32 v8, v8, v10
    v_mov_b32_dpp v9, v8 quad_perm:[1,0,3,2] row_mask:0xf bank_mask:0xf
    v_cvt_pk_bf16_f32 v8, v8, v9
    s_mov_b64 exec, {sM}
    global_store_dword v35, v8, {pWS} sc1
    s_mov_b64 exec, -1
    ''')
    g.stamp(15)
    g('s_branch L_end')
    g(f'''
    L_f2:
    s_lshl_b32 {t0}, {sX}, 2
    s_add_u32 {t3}, {t3}, {t0}
    s_mul_i32 {t0}, {sW}, {224*1024}
    s_lshl_b32 {t1}, {t3}, 5
    s_add_u32 {t0}, {t0}, {t1}
    v_lshrrev_b32 v8, 1, {vL}
    v_lshlrev_b32 v8, 10, v8
    v_and_b32 v9, 1, {vL}
    v_lshl_add_u32 v8, v9, 4, v8
    v_add_u32 v8, {t0}, v8
    s_lshl_b32 {t2}, {sW}, 13
    s_add_u32 {t2}, {t2}, {L_ROLE}
    ''')
    for j in range(7):
        g(f's_add_u32 m0, {t2}, {j*1024}')
        if j: g(f'v_add_u32 v8, 0x8000, v8')
        g(f'global_load_lds_dwordx4 v8, {pWD} {nt}')
    g(f'''
    v_bfe_u32 v8, {vL}, 2, 2
    v_lshl_add_u32 v8, {vG}, 3, v8
    v_lshlrev_b32 v8, 5, v8
    v_and_b32 v9, 3, {vL}
    v_lshl_add_u32 v8, v9, 3, v8
    v_add_u32 v31, {t2}, v8
    s_mul_i32 {t0}, {sW}, 1792
    s_add_u32 {t0}, {t0}, {WS_ACT}
    v_and_b32 v8, 3, {vN}
    v_lshlrev_b32 v8, 4, v8
    v_lshl_add_u32 v8, {vG}, 6, v8
    v_add_u32 v32, {t0}, v8
    s_lshl_b32 {t0}, {sW}, 8
    s_add_u32 {t0}, {t0}, {L_RED}
    v_lshlrev_b32 v8, 4, {vN}
    v_add_u32 v33, {t0}, v8
    v_lshl_add_u32 v8, {vG}, 2, v8
    v_add_u32 v34, {L_RED}, v8
    s_lshl_b32 {t0}, {t3}, 6
    s_add_u32 {t0}, {t0}, {L_H32}
    v_lshlrev_b32 v8, 11, {vG}
    v_lshl_add_u32 v8, {vN}, 2, v8
    v_add_u32 v35, {t0}, v8
    s_lshl_b32 {t0}, {t3}, 5
    v_lshlrev_b32 v8, 10, {vG}
    v_lshl_add_u32 v8, {vN}, 1, v8
    v_add_u32 v36, {t0}, v8
    s_cmp_ge_u32 {sW}, 4
    s_cbranch_scc1 L_f2_w
    ''')
    h_prep()
    g(f'''
    s_lshl_b32 {t0}, {sW}, 11
    s_add_u32 {t0}, {t0}, {L_H32}
    v_lshlrev_b32 v30, 1, v30
    v_add_u32 v30, {t0}, v30
    L_f2_w:
    s_waitcnt vmcnt(0)
    ''')
    for j in range(7):
        for a in range(2):
            g(f'ds_read_b64_tr_b16 {V(WB+4*j+2*a,2)}, v31 offset:{j*1024 + a*128}')
    g(f'''
    s_cmp_ge_u32 {sW}, 4
    s_cbranch_scc1 L_f2_a
    ''')
    h_gather()
    g(f'''
    ds_write_b128 v30, {V(H0,4)}
    ds_write_b128 v30, {V(H0+4,4)} offset:1024
    L_f2_a:
    ''')
    g.stamp(14)
    lab = poll_begin(g, 'pa')
    for j in range(7): g(f'global_load_dwordx4 {V(AF+4*j,4)}, v32, {pWS} offset:{j*256} sc1')
    g('s_waitcnt vmcnt(0)')
    check_sent(g, 'v8', [V(AF+k) for k in range(28)])
    poll_end(g, lab)
    g('s_waitcnt lgkmcnt(0)')
    for j in range(7): g(f'{MFMA} {V(DG,4)}, {V(AF+4*j,4)}, {V(WB+4*j,4)}, {V(DG,4) if j else 0}')
    g(f'''
    s_mov_b64 exec, 0xffff
    ds_write_b128 v33, {V(DG,4)}
    s_mov_b64 exec, -1
    s_waitcnt lgkmcnt(0)
    s_barrier
    s_cmp_lg_u32 {sW}, 0
    s_cbranch_scc1 L_end
    ''')
    for k in range(4): g(f'ds_read2st64_b32 {V(8+2*k,2)}, v34 offset0:{2*k} offset1:{2*k+1}')
    g(f'''
    ds_read_b32 v16, v35
    s_mov_b32 s44, 0x55555555
    s_mov_b32 s45, 0x55555555
    s_waitcnt lgkmcnt(3)
    v_add_f32 v8, v8, v9
    v_add_f32 v10, v10, v11
    s_waitcnt lgkmcnt(0)
    v_add_f32 v12, v12, v13
    v_add_f32 v14, v14, v15
    v_add_f32 v8, v8, v10
    v_add_f32 v12, v12, v14
    v_add_f32 v8, v8, v16
    v_add_f32 v8, v8, v12
    v_mov_b32_dpp v9, v8 quad_perm:[1,0,3,2] row_mask:0xf bank_mask:0xf
    v_cvt_pk_bf16_f32 v8, v8, v9
    s_mov_b64 exec, {sM}
    global_store_dword v36, v8, {pOUT}
    s_cmp_lg_u32 {t3}, 0
    s_cbranch_scc1 L_noep
    s_mov_b64 exec, 1
    v_mov_b32 v10, {WS_EPOCH}
    v_mov_b32 v11, {sTAG}
    global_store_dword v10, v11, {pWS} sc1
    L_noep:
    s_mov_b64 exec, -1
    ''')
    g.stamp(15)
    g('L_end:')
    if o['stamps']:
        g('s_waitcnt lgkmcnt(0)')
        for k in range(16): g(f'v_writelane_b32 v4, s{64+2*k}, {k}')
        g(f'''
        s_lshl_b32 {t0}, s2, 3
        s_add_u32 {t0}, {t0}, {sW}
        s_lshl_b32 {t0}, {t0}, 6
        s_add_u32 {t0}, {t0}, {WS_STAMP}
        v_lshlrev_b32 v5, 2, {vL}
        v_add_u32 v5, {t0}, v5
        s_mov_b64 exec, 0xffff
        global_store_dword v5, v4, {pWS}
        ''')
    g('L_exit:')
    g('s_endpgm')
    body, nadd = hazfix.fix('\n'.join(g.L))
    head = f'''; Fused pre-LN compressed-KV attention + GEGLU FFN decode step, one persistent launch (256 workgroups).
; @launch grid=(256,1,1) block=(512,1,1) lds={LDS_BYTES}
.amdgcn_target "amdgcn-amd-amdhsa--gfx950"
.text
.globl {NAME}
.p2align 8
.type {NAME},@function
{NAME}:
'''
    tail = f'''
.section .rodata,"a"
.p2align 6
.amdhsa_kernel {NAME}
  .amdhsa_next_free_vgpr 256
  .amdhsa_next_free_sgpr {96 if o['stamps'] else 48}
  .amdhsa_accum_offset 256
  .amdhsa_group_segment_fixed_size 0
  .amdhsa_kernarg_size 104
  .amdhsa_user_sgpr_count 2
  .amdhsa_user_sgpr_kernarg_segment_ptr 1
  .amdhsa_system_sgpr_workgroup_id_x 1
.end_amdhsa_kernel
'''
    return head + body + tail

if __name__ == '__main__':
    opt = {}
    for a in sys.argv[2:]:
        k, v = a.split('=')
        opt[k] = int(v) if v.lstrip('-').isdigit() else v
    open(sys.argv[1], 'w').write(gen(opt))
```

```python
import sys, struct
import hazfix

NAME = 'sequential_preLN__compressed_kv_cla__geglu_ffn__decode_kernel'

WS_EPOCH = 0
WS_FLAGP = 0x1000
WS_FLAGN = 0x2000
WS_QABS  = 0x10000
WS_CLR   = 0x100000
WS_PART  = WS_CLR
WS_STAT  = WS_PART + 0x400000
WS_CTX   = WS_STAT + 0x8000
WS_HPART = WS_CTX + 0x20000
WS_ACT   = WS_HPART + 0x8000
CLR_PER  = 34 * 1024
WS_STAMP = 0x800000

L_CKV = 0
L_QA  = 0x20000
L_PL  = 0x24000
L_MX  = 0x25200
L_XN  = 0x25800
L_Q   = 0x26800
L_CC  = 0x27000
L_WT  = 0x27900
LDS_BYTES = 0x28000
L_WV   = 0
L_ROLE = 40960
L_RED  = L_QA
L_HN   = L_QA + 0x2000
L_H32  = L_QA + 0x2000

def f2i(x): return struct.unpack('<I', struct.pack('<f', x))[0]
SCALE = (128 ** -0.5) * 1.4426950408889634

class G:
    def __init__(self, opt):
        self.o = opt
        self.L = []
        self.nst = 0
        self.uid = 0
    def __call__(self, s):
        for line in s.strip('\n').split('\n'):
            line = line.rstrip()
            if not line.strip(): continue
            t = line.strip()
            self.L.append(t if t.endswith(':') else '    ' + t)
    def lab(self, p):
        self.uid += 1
        return f'L_{p}{self.uid}'
    def stamp(self, k):
        if self.o.get('stamps'):
            self(f's_memrealtime s[{64+2*k}:{65+2*k}]')

pX, pCKV, pWQ, pWUK, pWUV, pWO, pWG, pWU, pWD, pOUT, pWS = ('s[4:5]','s[6:7]','s[8:9]','s[10:11]','s[12:13]','s[14:15]','s[18:19]','s[20:21]','s[22:23]','s[24:25]','s[28:29]')
sW, sX, sR, sTAG, sCNT = 's3', 's30', 's31', 's32', 's33'
sB, sHH, sS, sH, sCQ = 's34', 's35', 's36', 's37', 's38'
t0, t1, t2, t3 = 's40', 's41', 's42', 's43'
sM = 's[44:45]'
vL, vN, vG = 'v1', 'v2', 'v3'
def V(a, n=1): return f'v{a}' if n == 1 else f'v[{a}:{a+n-1}]'
MFMA = 'v_mfma_f32_16x16x32_bf16'

def allreduce(g, op, regs, tmps, full=True):
    for k in (1, 2, 4, 8):
        for r in regs:
            g(f'{op}_dpp {r}, {r}, {r} row_ror:{k} row_mask:0xf bank_mask:0xf')
    if full:
        for sw in ('v_permlane16_swap_b32', 'v_permlane32_swap_b32'):
            for r, t in zip(regs, tmps): g(f'v_mov_b32 {t}, {r}')
            for r, t in zip(regs, tmps): g(f'{sw} {t}, {r}')
            for r, t in zip(regs, tmps): g(f'{op} {r}, {r}, {t}')

def rne(g, r):
    g(f'v_cvt_pk_bf16_f32 {r}, {r}, {r}')
    g(f'v_and_b32 {r}, 0xffff0000, {r}')

def poll_begin(g, name):
    lab = g.lab(name)
    g(f's_mov_b32 {sCNT}, 0')
    g(f'{lab}:')
    return lab
def poll_end(g, lab, sleep=None):
    done = lab + '_ok'
    if sleep is None: sleep = g.o.get('sleep', 0)
    g(f"""
    s_cbranch_vccz {done}
    {'s_mov_b64 exec, vcc' if g.o['mask'] else ''}
    {'s_sleep '+str(sleep) if sleep else ''}
    s_add_u32 {sCNT}, {sCNT}, 1
    s_cmp_lt_u32 {sCNT}, {g.o.get('maxpoll', 65536)}
    s_cbranch_scc1 {lab}
    {done}:
    {'s_mov_b64 exec, -1' if g.o['mask'] else ''}
    """)
def check_sent(g, tmp, regs):
    regs = list(regs)
    if len(regs) == 1:
        g(f'v_cmp_eq_u32 vcc, -1, {regs[0]}'); return
    if len(regs) == 2:
        g(f'v_max_u32 {tmp}, {regs[0]}, {regs[1]}'); rest = []
    else:
        g(f'v_max3_u32 {tmp}, {regs[0]}, {regs[1]}, {regs[2]}'); rest = regs[3:]
    while rest:
        if len(rest) >= 2:
            g(f'v_max3_u32 {tmp}, {tmp}, {rest[0]}, {rest[1]}'); rest = rest[2:]
        else:
            g(f'v_max_u32 {tmp}, {tmp}, {rest[0]}'); rest = []
    g(f'v_cmp_eq_u32 vcc, -1, {tmp}')

sLDB = 's39'
aCK = 25
def ckv_addr(g):
    g(f"""
    s_lshl_b32 {t0}, {sB}, 22
    s_lshl_b32 {t1}, {sS}, 17
    s_add_u32 {t0}, {t0}, {t1}
    s_lshl_b32 {sLDB}, {sW}, 15
    s_add_u32 {t0}, {t0}, {sLDB}
    v_lshlrev_b32 v8, 4, {vL}
    v_add_u32 {V(aCK)}, {t0}, v8
    """)
def ckv_dma(g, groups, rev):
    nt = g.o['nt']
    for j in groups:
        g(f's_add_u32 m0, {sLDB}, {j*4096}')
        for q in (range(3, -1, -1) if rev else range(4)):
            i = 4*j + q
            f = (i & 15) ^ ((i & 1) << 3)
            g(f'v_xor_b32 v9, {hex((j << 12) | (f << 4))}, {V(aCK)}')
            g(f'global_load_lds_dwordx4 v9, {pCKV} offset:{q*1024} {nt}')
def tag(g):
    g(f"""
    s_mul_i32 {sTAG}, {sTAG}, 0x19660d
    s_add_u32 {sTAG}, {sTAG}, 0x3c6ef35f
    """)

AQ, AS, AV = 26, 30, 34
aMXw, aMXr, aPLw, aPLr, aPT, aSM, aGQ, aQW, aFN = 50, 51, 52, 53, 54, 55, 56, 57, 61
aWS, aWVw, aWVr, aST, aDT, aCCw, aCCr, aCT, aWTw, aWTr = 62, 63, 248, 249, 250, 251, 252, 253, 254, 255
XM, XS = 4, 22
QFR, SFR, SA, PF, OA, LA, ST = 64, 128, 192, 196, 212, 228, 232
GQ = PF

def setup_att(g):
    g(f"""
    L_setup:
    v_xor_b32 v8, {vN}, {vG}
    v_lshlrev_b32 v8, 4, v8
    v_lshl_add_u32 v8, {vN}, 10, v8
    v_add_u32 {V(AQ)}, {L_QA}, v8
    v_xor_b32 {V(AQ+1)}, 64, {V(AQ)}
    v_xor_b32 {V(AQ+2)}, 128, {V(AQ)}
    v_xor_b32 {V(AQ+3)}, 192, {V(AQ)}
    v_and_b32 v8, 8, {vN}
    v_and_b32 v9, 3, {vN}
    v_lshl_add_u32 v8, v9, 1, v8
    v_bfe_u32 v9, {vN}, 2, 1
    v_add_u32 v8, v8, v9
    v_lshlrev_b32 v9, 3, v9
    v_xor_b32 v9, v9, v8
    v_xor_b32 v9, v9, {vG}
    v_lshlrev_b32 v9, 4, v9
    v_lshl_add_u32 v9, v8, 10, v9
    s_lshl_b32 {t0}, {sW}, 14
    v_add_u32 {V(AS)}, {t0}, v9
    v_xor_b32 {V(AS+1)}, 64, {V(AS)}
    v_xor_b32 {V(AS+2)}, 128, {V(AS)}
    v_xor_b32 {V(AS+3)}, 192, {V(AS)}
    v_bfe_u32 v8, {vL}, 2, 2
    v_lshlrev_b32 v8, 1, v8
    v_lshl_add_u32 v9, {vG}, 3, v8
    v_and_b32 v10, 15, v9
    v_bfe_u32 v11, {vL}, 1, 1
    s_lshl_b32 {t0}, {sW}, 3
    v_add_u32 v11, {t0}, v11
    v_xor_b32 v10, v10, v11
    v_lshlrev_b32 v10, 4, v10
    v_lshl_add_u32 v10, v9, 10, v10
    v_and_b32 v11, 1, {vL}
    v_lshl_add_u32 v10, v11, 3, v10
    """)
    for tau in range(4):
        for a in range(2):
            k = 2*tau + a
            g(f'v_xor_b32 {V(AV+k)}, {hex(((2*tau) ^ (9*a)) << 4)}, v10')
            g(f'v_xor_b32 {V(AV+8+k)}, {hex((((2*tau) ^ (9*a)) << 4) | 0x10000)}, v10')
    g(f"""
    s_lshl_b32 {t0}, {sW}, 2
    s_add_u32 {t0}, {t0}, {L_MX}
    v_lshlrev_b32 v8, 5, {vN}
    v_add_u32 {V(aMXw)}, {t0}, v8
    v_add_u32 {V(aMXr)}, {L_MX}, v8
    v_mul_u32_u24 v8, 272, {vN}
    v_add_u32 v8, {L_PL}, v8
    v_lshl_add_u32 {V(aPLr)}, {vG}, 4, v8
    v_lshl_add_u32 v8, {vG}, 3, v8
    s_lshl_b32 {t0}, {sW}, 5
    v_add_u32 {V(aPLw)}, {t0}, v8
    s_lshl_b32 {t0}, {sHH}, 21
    s_lshr_b32 {t1}, {sW}, 1
    s_lshl_b32 {t1}, {t1}, 15
    s_add_u32 {t0}, {t0}, {t1}
    s_lshl_b32 {t1}, {sB}, 13
    s_add_u32 {t0}, {t0}, {t1}
    s_lshl_b32 {t1}, {sS}, 8
    s_add_u32 {t0}, {t0}, {t1}
    s_and_b32 {t1}, {sW}, 1
    s_lshl_b32 {t1}, {t1}, 7
    s_add_u32 {t0}, {t0}, {t1}
    s_add_u32 {t0}, {t0}, {WS_PART}
    v_lshlrev_b32 v8, 19, {vG}
    v_lshlrev_b32 v9, 3, {vN}
    v_add3_u32 {V(aPT)}, v8, v9, {t0}
    s_lshl_b32 {t0}, {sB}, 13
    s_lshl_b32 {t1}, {sHH}, 12
    s_add_u32 {t0}, {t0}, {t1}
    s_lshl_b32 {t1}, {sS}, 7
    s_add_u32 {t0}, {t0}, {t1}
    s_add_u32 {t0}, {t0}, {WS_STAT}
    v_add_u32 {V(aSM)}, {t0}, v9
    s_lshl_b32 {t0}, {sB}, 15
    s_lshl_b32 {t1}, {sHH}, 14
    s_add_u32 {t0}, {t0}, {t1}
    s_and_b32 {t1}, {sW}, 3
    s_lshl_b32 {t1}, {t1}, 12
    s_add_u32 {t0}, {t0}, {t1}
    s_add_u32 {t0}, {t0}, {WS_QABS}
    v_lshlrev_b32 v8, 4, {vL}
    v_add_u32 {V(aGQ)}, {t0}, v8
    v_add_u32 {V(aFN)}, {WS_FLAGN}, v8
    s_lshr_b32 {t0}, {t1}, 6
    v_xor_b32 v8, {t0}, v8
    s_add_u32 {t1}, {t1}, {L_QA}
    v_add_u32 {V(aQW)}, {t1}, v8
    v_xor_b32 {V(aQW+1)}, 16, {V(aQW)}
    v_xor_b32 {V(aQW+2)}, 32, {V(aQW)}
    v_xor_b32 {V(aQW+3)}, 48, {V(aQW)}
    s_setpc_b64 s[46:47]
    """)

def setup_x(g):
    g(f"""
    s_lshl_b32 {t0}, {sH}, 8
    s_lshl_b32 {t1}, {sCQ}, 20
    s_add_u32 {t0}, {t0}, {t1}
    s_lshr_b32 {t1}, {sW}, 2
    s_lshl_b32 {t1}, {t1}, 19
    s_add_u32 {t0}, {t0}, {t1}
    s_and_b32 {t1}, {sW}, 3
    s_lshl_b32 {t1}, {t1}, 15
    s_add_u32 {t0}, {t0}, {t1}
    v_lshlrev_b32 v8, 17, {vG}
    v_lshlrev_b32 v12, 4, {vN}
    v_add3_u32 {V(aWS)}, v8, v12, {t0}
    s_mul_i32 {t0}, {sW}, {16*288}
    v_mul_u32_u24 v8, 288, {vG}
    v_add3_u32 {V(aWVw)}, v8, v12, {t0}
    v_bfe_u32 v9, {vL}, 2, 2
    v_lshl_add_u32 v9, {vG}, 3, v9
    v_mul_u32_u24 v9, 288, v9
    v_and_b32 v10, 3, {vL}
    v_lshl_add_u32 v9, v10, 3, v9
    s_lshl_b32 {t0}, {sW}, 5
    v_add_u32 {V(aWVr)}, {t0}, v9
    s_and_b32 {t1}, {sW}, 1
    s_lshl_b32 {t0}, {t1}, 14
    s_lshr_b32 {t2}, {sH}, 4
    s_lshl_b32 {t2}, {t2}, 12
    s_add_u32 {t0}, {t0}, {t2}
    s_and_b32 {t2}, {sH}, 15
    s_lshl_b32 {t2}, {t2}, 3
    s_add_u32 {t0}, {t0}, {t2}
    s_add_u32 {t0}, {t0}, {WS_STAT}
    v_lshrrev_b32 v8, 5, {vL}
    v_lshlrev_b32 v8, 13, v8
    v_and_b32 v9, 31, {vL}
    v_lshlrev_b32 v9, 7, v9
    v_add3_u32 {V(aST)}, v8, v9, {t0}
    s_lshl_b32 {t0}, {t1}, 7
    s_add_u32 {t0}, {t0}, {L_WT}
    v_lshlrev_b32 v8, 1, {vL}
    v_add_u32 {V(aWTw)}, {t0}, v8
    s_lshl_b32 {t0}, {sW}, 5
    s_add_u32 {t0}, {t0}, {L_WT}
    v_lshlrev_b32 v8, 3, {vG}
    v_add_u32 {V(aWTr)}, {t0}, v8
    s_lshl_b32 {t0}, {sH}, 17
    s_lshl_b32 {t2}, {sCQ}, 15
    s_add_u32 {t0}, {t0}, {t2}
    s_lshl_b32 {t2}, {sW}, 12
    s_add_u32 {t0}, {t0}, {t2}
    s_add_u32 {t0}, {t0}, {WS_PART}
    v_lshlrev_b32 v9, 10, {vG}
    v_add3_u32 {V(aDT)}, v9, v12, {t0}
    s_mul_i32 {t0}, {sW}, 272
    s_add_u32 {t0}, {t0}, {L_CC}
    v_add3_u32 {V(aCCw)}, v8, v12, {t0}
    v_lshrrev_b32 v9, 2, {vN}
    v_and_b32 v10, 1, {vN}
    v_lshl_add_u32 v9, v9, 1, v10
    v_mul_u32_u24 v9, 272, v9
    v_lshl_add_u32 v9, {vG}, 4, v9
    v_add_u32 {V(aCCr)}, {L_CC}, v9
    s_lshl_b32 {t0}, {sH}, 12
    s_lshl_b32 {t2}, {sCQ}, 10
    s_add_u32 {t0}, {t0}, {t2}
    s_lshl_b32 {t2}, {sW}, 7
    s_add_u32 {t0}, {t0}, {t2}
    s_add_u32 {t0}, {t0}, {WS_CTX}
    v_and_b32 v11, 7, {vN}
    v_lshlrev_b32 v9, 1, v11
    v_lshl_add_u32 v9, {vG}, 4, v9
    v_lshrrev_b32 v8, 3, {vN}
    v_lshlrev_b32 v8, 6, v8
    v_add3_u32 {V(aCT)}, v8, v9, {t0}
    v_cmp_eq_u32 vcc, 1, v10
    v_mov_b32 v8, 0x0c0c0100
    v_mov_b32 v9, 0x01000c0c
    v_cndmask_b32 {V(XS)}, v8, v9, vcc
    v_mov_b32 v8, 0x0c0c0302
    v_mov_b32 v9, 0x03020c0c
    v_cndmask_b32 {V(XS+1)}, v8, v9, vcc
    v_lshrrev_b32 v11, 1, v11
    """)
    for j in range(4):
        g(f'v_cmp_eq_u32 vcc, {j}, v11')
        g(f'v_cndmask_b32 {V(XM+j)}, 0, -1, vcc')

def gen(opt):
    o = dict(nt='', stamps=False, maxpoll=65536, sleep=0, fsleep=4, touch=1, noclr=0, early=3, mask=1, isleep=2, tuk=1, wsoff=0, prio=1, nobc=0)
    o.update(opt)
    g = G(o)
    nt = o['nt']
    g(f"""
    s_cmp_ge_u32 s2, 0x100
    s_cbranch_scc1 L_exit
    s_load_dwordx16 s[4:19], s[0:1], 0
    s_load_dwordx8 s[20:27], s[0:1], 64
    s_load_dwordx2 s[28:29], s[0:1], 96
    """)
    if o['stamps']:
        for k in range(16): g(f's_mov_b32 s{64+2*k}, 0')
    g.stamp(0)
    g(f"""
    v_lshrrev_b32 v4, 6, v0
    v_and_b32 {vL}, 63, v0
    v_readfirstlane_b32 {sW}, v4
    v_and_b32 {vN}, 15, {vL}
    v_lshrrev_b32 {vG}, 4, {vL}
    s_and_b32 {sX}, s2, 7
    s_lshr_b32 {sR}, s2, 3
    s_lshr_b32 {sB}, {sX}, 1
    s_and_b32 {sHH}, {sR}, 1
    s_and_b32 {sS}, {sX}, 1
    s_lshl_b32 {sS}, {sS}, 4
    s_lshr_b32 {t0}, {sR}, 1
    s_add_u32 {sS}, {sS}, {t0}
    s_lshr_b32 {t0}, {sR}, 3
    s_lshl_b32 {sH}, {sX}, 2
    s_add_u32 {sH}, {sH}, {t0}
    s_bfe_u32 {sCQ}, {sR}, 0x20001
    """)
    if o['prio']:
        g(f"""
        s_cmp_lt_u32 {sW}, 4
        s_cbranch_scc1 L_noprio
        s_setprio 3
        L_noprio:
        """)
    for k in (26, 27, 28, 29, aPT, aSM, aGQ, aFN, aST, aDT, aCT): g(f'v_mov_b32 v{k}, 0')
    g(f"""
    s_waitcnt lgkmcnt(0)
    {'s_add_u32 s28, s28, '+hex(o['wsoff']) if o['wsoff'] else ''}
    {'s_addc_u32 s29, s29, 0' if o['wsoff'] else ''}
    s_cmp_eq_u32 {sHH}, 1
    s_load_dword {sTAG}, {pWS}, {WS_EPOCH}
    s_cbranch_scc1 L_nonp
    """)
    WQ, AP, SEL, D1, D2, WUKF, QF, DQ = 64, 128, 160, 164, 168, 172, 188, 204
    LT = 208
    pQPw, pWK, pQPr, pQw, pQr, pQOw, pQOr, pPUB, pFP, pFD = 216, 217, 221, 222, 223, 224, 225, 226, 227, 228
    g(f"""
    s_cmp_lt_u32 {sW}, 4
    s_cbranch_scc1 L_p_issue
    s_and_b32 {t0}, {sW}, 3
    s_lshl_b32 {t0}, {t0}, 10
    v_lshlrev_b32 v9, 4, {vL}
    v_add_u32 v9, {t0}, v9
    global_load_dwordx4 v[4:7], v9, {pX}
    s_cmp_lg_u32 {sW}, 7
    s_cbranch_scc1 L_p_noclr
    s_lshl_b32 {t0}, {sH}, 10
    s_lshl_b32 {t1}, {sCQ}, 8
    s_add_u32 {t0}, {t0}, {t1}
    s_add_u32 {t0}, {t0}, {WS_QABS}
    v_lshlrev_b32 v8, 15, {vG}
    v_lshl_add_u32 v8, {vN}, 4, v8
    v_add_u32 v8, {t0}, v8
    v_mov_b32 v12, -1
    v_mov_b32 v13, -1
    v_mov_b32 v14, -1
    v_mov_b32 v15, -1
    global_store_dwordx4 v8, v[12:15], {pWS} sc1
    L_p_noclr:
    s_setprio 0
    s_call_b64 s[46:47], L_setup
    s_waitcnt lgkmcnt(0)
    """)
    tag(g)
    g(f"""
    s_waitcnt vmcnt(0)
    s_cmp_lg_u32 {sW}, 7
    s_cbranch_scc1 L_p_ln
    s_lshl_b32 {t0}, {sX}, 7
    s_lshl_b32 {t1}, {sR}, 2
    s_add_u32 {t0}, {t0}, {t1}
    s_add_u32 {t0}, {t0}, {WS_FLAGP}
    v_mov_b32 v8, {t0}
    v_mov_b32 v10, {sTAG}
    v_mov_b32 v11, {sTAG}
    s_mov_b64 exec, 1
    global_store_dwordx2 v8, v[10:11], {pWS} sc1
    s_mov_b64 exec, -1
    L_p_ln:
    """)
    for k in range(4):
        g(f'v_lshlrev_b32 v{8+2*k}, 16, v{4+k}')
        g(f'v_and_b32 v{9+2*k}, 0xffff0000, v{4+k}')
    g("""
    v_add_f32 v16, v8, v9
    v_add_f32 v17, v10, v11
    v_add_f32 v18, v12, v13
    v_add_f32 v19, v14, v15
    v_add_f32 v16, v16, v17
    v_add_f32 v18, v18, v19
    v_add_f32 v16, v16, v18
    """)
    allreduce(g, 'v_add_f32', ['v16'], ['v17'])
    g(f'v_mul_f32 v16, {hex(f2i(1/512))}, v16')
    for k in range(8): g(f'v_sub_f32 v{LT+k}, v{8+k}, v16')
    g(f'v_mul_f32 v18, v{LT}, v{LT}')
    for k in range(1, 8): g(f'v_fmac_f32 v18, v{LT+k}, v{LT+k}')
    allreduce(g, 'v_add_f32', ['v18'], ['v17'])
    g(f'v_mul_f32 v18, {hex(f2i(1/512))}, v18')
    rne(g, 'v16'); rne(g, 'v18')
    g(f'v_add_f32 v18, {hex(f2i(1e-5))}, v18')
    rne(g, 'v18')
    g('v_sqrt_f32 v18, v18')
    rne(g, 'v18')
    g('v_rcp_f32 v18, v18')
    for k in range(8): g(f'v_sub_f32 v{8+k}, v{8+k}, v16')
    for k in range(4): g(f'v_cvt_pk_bf16_f32 v{4+k}, v{8+2*k}, v{9+2*k}')
    for k in range(4):
        g(f'v_lshlrev_b32 v{8+2*k}, 16, v{4+k}')
        g(f'v_and_b32 v{9+2*k}, 0xffff0000, v{4+k}')
    for k in range(8): g(f'v_mul_f32 v{8+k}, v{8+k}, v18')
    for k in range(4): g(f'v_cvt_pk_bf16_f32 v{4+k}, v{8+2*k}, v{9+2*k}')
    g(f"""
    s_and_b32 {t0}, {sW}, 3
    s_lshl_b32 {t0}, {t0}, 10
    s_add_u32 {t0}, {t0}, {L_XN}
    v_lshlrev_b32 v9, 4, {vL}
    v_add_u32 v9, {t0}, v9
    ds_write_b128 v9, v[4:7]
    s_waitcnt lgkmcnt(0)
    s_barrier
    L_p_issue:
    s_lshr_b32 {t3}, {sCQ}, 1
    s_lshl_b32 {t3}, {t3}, 2
    s_xor_b32 {t3}, {t3}, {sW}
    s_lshl_b32 {t0}, {t3}, 19
    s_and_b32 {t1}, {sCQ}, 1
    s_lshl_b32 {t1}, {t1}, 18
    s_or_b32 {t0}, {t0}, {t1}
    s_lshl_b32 {t1}, {sH}, 8
    s_or_b32 {t0}, {t0}, {t1}
    v_lshlrev_b32 v10, 14, {vG}
    v_lshl_add_u32 v10, {vN}, 4, v10
    v_add_u32 v10, {t0}, v10
    """)
    for i in range(8):
        for p in range(2):
            g(f'v_xor_b32 v11, {hex((i << 16) | (p << 13))}, v10')
            g(f'global_load_dwordx4 {V(WQ+8*i+4*p,4)}, v11, {pWQ} {nt}')
    g(f"""
    s_lshl_b32 {t0}, {sCQ}, 20
    s_lshl_b32 {t1}, {sW}, 17
    s_or_b32 {t0}, {t0}, {t1}
    s_lshl_b32 {t1}, {sH}, 8
    s_or_b32 {t0}, {t0}, {t1}
    v_xor_b32 v12, {vN}, {vG}
    v_lshlrev_b32 v12, 4, v12
    v_lshl_add_u32 v10, {vG}, 13, v12
    v_add_u32 v10, {t0}, v10
    s_lshl_b32 {t2}, {sW}, 14
    """)
    for u in range(4):
        g(f's_add_u32 m0, {t2}, {u*1024}')
        g(f'v_xor_b32 v11, {hex((u << 15) | (u << 6))}, v10')
        g(f'global_load_lds_dwordx4 v11, {pWUK} {nt}')
    g.stamp(1)
    g(f"""
    v_lshl_add_u32 v12, {vN}, 8, v12
    v_add_u32 {V(pWK)}, {t2}, v12
    v_xor_b32 {V(pWK+1)}, 64, {V(pWK)}
    v_xor_b32 {V(pWK+2)}, 128, {V(pWK)}
    v_xor_b32 {V(pWK+3)}, 192, {V(pWK)}
    v_and_b32 v8, 1, {vN}
    v_cmp_eq_u32 vcc, 1, v8
    v_mov_b32 v10, 0x0c0c0100
    v_mov_b32 v11, 0x01000c0c
    v_mov_b32 v12, 0x0c0c0302
    v_mov_b32 v13, 0x03020c0c
    v_cndmask_b32 v10, v10, v11, vcc
    v_cndmask_b32 v12, v12, v13, vcc
    v_and_b32 v8, 2, {vN}
    v_cmp_eq_u32 vcc, 0, v8
    v_mov_b32 v11, 0x0c0c0c0c
    v_cndmask_b32 {V(SEL)}, v11, v10, vcc
    v_cndmask_b32 {V(SEL+1)}, v10, v11, vcc
    v_cndmask_b32 {V(SEL+2)}, v11, v12, vcc
    v_cndmask_b32 {V(SEL+3)}, v12, v11, vcc
    s_lshl_b32 {t0}, {t3}, 7
    s_and_b32 {t1}, {sCQ}, 1
    s_lshl_b32 {t1}, {t1}, 6
    s_add_u32 {t0}, {t0}, {t1}
    s_add_u32 {t0}, {t0}, {L_XN}
    v_lshrrev_b32 v8, 2, {vN}
    v_lshlrev_b32 v8, 10, v8
    v_lshl_add_u32 v8, {vG}, 2, v8
    v_add_u32 v8, {t0}, v8
    s_cmp_ge_u32 {sW}, 4
    s_cbranch_scc1 L_p_ap
    s_waitcnt lgkmcnt(0)
    """)
    tag(g)
    g("""
    s_barrier
    L_p_ap:
    """)
    for i in range(8):
        g(f'v_xor_b32 v9, {i*16}, v8')
        g(f'ds_read_b32 v{12+i}, v9')
    g(f"""
    s_lshl_b32 {t0}, {sW}, 11
    s_add_u32 {t0}, {t0}, {L_QA}
    v_lshlrev_b32 v8, 4, {vL}
    v_add_u32 {V(pQPw)}, {t0}, v8
    v_lshlrev_b32 v8, 2, v0
    v_add_u32 {V(pQPr)}, {L_QA}, v8
    v_bfe_u32 v8, v0, 6, 2
    v_mul_u32_u24 v8, 320, v8
    v_bfe_u32 v9, v0, 2, 4
    v_lshl_add_u32 v8, v9, 4, v8
    v_lshrrev_b32 v9, 8, v0
    v_lshl_add_u32 v8, v9, 3, v8
    v_and_b32 v9, 3, v0
    v_lshl_add_u32 v8, v9, 1, v8
    v_add_u32 {V(pQw)}, {L_Q}, v8
    v_and_b32 v9, 3, {vN}
    v_mul_u32_u24 v8, 320, v9
    v_lshl_add_u32 v8, {vG}, 4, v8
    v_add_u32 {V(pQr)}, {L_Q}, v8
    v_mul_u32_u24 v8, 288, v9
    v_lshl_add_u32 v8, {vG}, 3, v8
    s_lshl_b32 {t0}, {sW}, 5
    s_add_u32 {t0}, {t0}, {L_CC}
    v_add_u32 {V(pQOw)}, {t0}, v8
    s_mul_i32 {t0}, {sW}, 288
    s_add_u32 {t0}, {t0}, {L_CC}
    v_lshlrev_b32 v8, 4, {vN}
    v_add_u32 {V(pQOr)}, {t0}, v8
    s_lshl_b32 {t0}, {sW}, 15
    s_lshl_b32 {t1}, {sH}, 10
    s_add_u32 {t0}, {t0}, {t1}
    s_lshl_b32 {t1}, {sCQ}, 8
    s_add_u32 {t0}, {t0}, {t1}
    s_add_u32 {t0}, {t0}, {WS_QABS}
    v_add_u32 {V(pPUB)}, {t0}, v8
    v_lshlrev_b32 v8, 3, {vL}
    v_add_u32 {V(pFP)}, {WS_FLAGP}, v8
    """)
    ckv_addr(g)
    for i in range(8):
        g(f's_waitcnt lgkmcnt({7-i})')
        for k in range(4):
            g(f'v_perm_b32 {V(AP+4*i+k)}, v{12+i}, v{12+i}, {V(SEL+k)}')
    g.stamp(2)
    for i in range(8):
        R = WQ + 8*i
        g(f"""
        s_waitcnt vmcnt({4 + 2*(7-i)})
        v_swap_b32 {V(R+2)}, {V(R+4)}
        v_swap_b32 {V(R+3)}, {V(R+5)}
        {MFMA} {V(D1,4)}, {V(AP+4*i,4)}, {V(R,4)}, {V(D1,4) if i else 0}
        {MFMA} {V(D2,4)}, {V(AP+4*i,4)}, {V(R+4,4)}, {V(D2,4) if i else 0}
        """)
    g.stamp(3)
    E = o['early']
    g(f"""
    ds_write_b128 {V(pQPw)}, {V(D1,4)}
    ds_write_b128 {V(pQPw)}, {V(D2,4)} offset:1024
    s_cmp_ge_u32 {sW}, 4
    s_cbranch_scc1 L_p_c1
    s_call_b64 s[46:47], L_setup
    """)
    ckv_dma(g, range(7, 7-E, -1), True)
    g(f"""
    s_waitcnt vmcnt({4*E})
    s_branch L_p_c2
    L_p_c1:
    s_waitcnt vmcnt(0)
    global_load_dwordx2 {V(pFD,2)}, {V(pFP)}, {pWS} sc1
    L_p_c2:
    """)
    for t in range(4): g(f'ds_read_b128 {V(WUKF+4*t,4)}, {V(pWK+t)}')
    g("""
    s_waitcnt lgkmcnt(0)
    s_barrier
    """)
    for k in range(4): g(f'ds_read2st64_b32 {V(12+2*k,2)}, {V(pQPr)} offset0:{16*k} offset1:{16*k+8}')
    g(f"""
    s_mov_b32 s44, 0x000f000f
    s_mov_b32 s45, 0x000f000f
    s_waitcnt lgkmcnt(2)
    v_add_f32 v12, v12, v13
    v_add_f32 v14, v14, v15
    s_waitcnt lgkmcnt(0)
    v_add_f32 v16, v16, v17
    v_add_f32 v18, v18, v19
    v_add_f32 v12, v12, v14
    v_add_f32 v16, v16, v18
    v_add_f32 v12, v12, v16
    v_cvt_pk_bf16_f32 v12, v12, v12
    ds_write_b16 {V(pQw)}, v12
    s_waitcnt lgkmcnt(0)
    s_barrier
    """)
    for t in range(4): g(f'ds_read_b128 {V(QF+4*t,4)}, {V(pQr)} offset:{64*t}')
    for t in range(4):
        g(f's_waitcnt lgkmcnt({3-t})')
        g(f'{MFMA} {V(DQ,4)}, {V(WUKF+4*t,4)}, {V(QF+4*t,4)}, {V(DQ,4) if t else 0}')
    g(f"""
    v_cvt_pk_bf16_f32 v12, {V(DQ)}, {V(DQ+1)}
    v_cvt_pk_bf16_f32 v13, {V(DQ+2)}, {V(DQ+3)}
    s_mov_b64 exec, {sM}
    ds_write_b64 {V(pQOw)}, v[12:13]
    s_mov_b64 exec, -1
    s_waitcnt lgkmcnt(0)
    s_barrier
    s_cmp_ge_u32 {sW}, 4
    s_cbranch_scc1 L_p_fp
    s_mov_b64 exec, 0xffff
    ds_read_b128 v[12:15], {V(pQOr)}
    s_waitcnt lgkmcnt(0)
    global_store_dwordx4 {V(pPUB)}, v[12:15], {pWS} sc1
    s_mov_b64 exec, -1
    """)
    g.stamp(4)
    ckv_dma(g, range(7-E, -1, -1), True)
    g.stamp(5)
    g(f"""
    s_branch L_ldw
    L_p_fp:
    s_mov_b32 {sCNT}, 0
    s_waitcnt vmcnt(0)
    L_pfp:
    v_cmp_ne_u32 vcc, {sTAG}, {V(pFD)}
    s_cbranch_vccz L_b0b
    s_add_u32 {sCNT}, {sCNT}, 1
    s_cmp_ge_u32 {sCNT}, {o['maxpoll']}
    s_cbranch_scc1 L_b0b
    s_sleep {o['fsleep']}
    global_load_dwordx2 {V(pFD,2)}, {V(pFP)}, {pWS} sc1
    s_waitcnt vmcnt(0)
    s_branch L_pfp
    """)
    setup_att(g)
    g(f"""
    L_nonp:
    s_cmp_lg_u32 {sW}, 7
    s_cbranch_scc1 L_n_su
    """)
    if o['tuk']:
        g(f"""
        s_lshl_b32 {t0}, {sCQ}, 20
        s_lshl_b32 {t1}, {sH}, 8
        s_add_u32 {t0}, {t0}, {t1}
        v_lshrrev_b32 v8, 1, {vL}
        v_lshlrev_b32 v8, 13, v8
        v_and_b32 v9, 1, {vL}
        v_lshl_add_u32 v8, v9, 7, v8
        v_add_u32 v8, {t0}, v8
        """)
        for k in range(4):
            if k: g('v_add_u32 v8, 0x40000, v8')
            g(f'global_load_dword v{16+k}, v8, {pWUK} {nt}')
    g(f"""
    s_lshl_b32 {t3}, {sX}, 4
    s_lshr_b32 {t1}, {sR}, 1
    s_add_u32 {t3}, {t3}, {t1}
    s_mul_i32 {t1}, {t3}, {CLR_PER}
    s_add_u32 {t1}, {t1}, {WS_CLR}
    v_lshlrev_b32 v8, 4, {vL}
    v_add_u32 v8, {t1}, v8
    v_mov_b32 v12, -1
    v_mov_b32 v13, -1
    v_mov_b32 v14, -1
    v_mov_b32 v15, -1
    """)
    for i in range(0 if o['noclr'] else CLR_PER // 1024):
        if i and i % 4 == 0: g('v_add_u32 v8, 0x1000, v8')
        g(f'global_store_dwordx4 v8, v[12:15], {pWS} offset:{(i % 4)*1024} sc1')
    g(f"""
    {'' if o['nobc'] else 's_barrier'}
    s_call_b64 s[46:47], L_setup
    s_branch L_n_x
    L_n_su:
    s_call_b64 s[46:47], L_setup
    """)
    ckv_addr(g)
    g(f"""
    {'' if o['nobc'] else 's_barrier'}
    s_cmp_ge_u32 {sW}, 4
    s_cbranch_scc1 L_n_x
    """)
    g.stamp(1)
    ckv_dma(g, range(8), False)
    g.stamp(5)
    g('L_n_x:')
    setup_x(g)
    g('s_waitcnt lgkmcnt(0)')
    tag(g)
    g(f"""
    s_cmp_lg_u32 {sW}, 7
    s_cbranch_scc1 L_n_done
    s_lshl_b32 {t3}, {t3}, 3
    s_add_u32 {t3}, {t3}, {WS_FLAGN}
    v_mov_b32 v9, {t3}
    v_mov_b32 v10, {sTAG}
    v_mov_b32 v11, {sTAG}
    v_lshlrev_b32 v8, 3, {vL}
    v_add_u32 v8, {WS_FLAGP + 512}, v8
    s_mov_b64 exec, 1
    s_waitcnt vmcnt(0)
    global_store_dwordx2 v9, v[10:11], {pWS} sc1
    s_mov_b64 exec, -1
    """)
    g.stamp(1)
    lab = poll_begin(g, 'pf')
    g(f"""
    global_load_dwordx2 v[14:15], v8, {pWS} sc1
    s_waitcnt vmcnt(0)
    v_cmp_ne_u32 vcc, {sTAG}, v14
    """)
    poll_end(g, lab, o['fsleep'])
    g.stamp(5)
    g(f"""
    L_n_done:
    s_cmp_ge_u32 {sW}, 4
    s_cbranch_scc1 L_b0b
    L_ldw:
    s_waitcnt vmcnt(0)
    L_b0b:
    s_barrier
    """)
    g.stamp(6)
    g(f"""
    s_cmp_lt_u32 {sW}, 4
    s_cbranch_scc1 L_sfr
    """)
    for j in range(4): g(f'global_load_dwordx4 {V(GQ+4*j,4)}, {V(aGQ)}, {pWS} offset:{j*1024} sc1')
    g('L_sfr:')
    for t in range(16): g(f'ds_read_b128 {V(SFR+4*t,4)}, {V(AS+(t&3))} offset:{256*(t>>2)}')
    g(f"""
    s_cmp_lt_u32 {sW}, 4
    s_cbranch_scc1 L_b0a
    s_mov_b32 {sCNT}, 0
    L_pq:
    s_waitcnt vmcnt(0)
    """)
    check_sent(g, 'v14', [V(GQ+k) for k in range(16)])
    g(f"""
    s_cbranch_vccz L_pq_ok
    s_add_u32 {sCNT}, {sCNT}, 1
    s_cmp_ge_u32 {sCNT}, {o['maxpoll']}
    s_cbranch_scc1 L_pq_ok
    {'s_mov_b64 exec, vcc' if o['mask'] else ''}
    {'s_sleep '+str(o['sleep']) if o['sleep'] else ''}
    """)
    for j in range(4): g(f'global_load_dwordx4 {V(GQ+4*j,4)}, {V(aGQ)}, {pWS} offset:{j*1024} sc1')
    g("""
    s_branch L_pq
    L_pq_ok:
    s_mov_b64 exec, -1
    """)
    for j in range(4): g(f'ds_write_b128 {V(aQW+j)}, {V(GQ+4*j,4)} offset:{j*1024}')
    g(f"""
    global_load_dwordx4 v[16:19], {V(aFN)}, {pWS} sc1
    s_waitcnt lgkmcnt(0)
    L_b0a:
    s_barrier
    """)
    g.stamp(7)
    for t in range(15): g(f'ds_read_b128 {V(QFR+4*t,4)}, {V(AQ+(t&3))} offset:{256*(t>>2)}')
    g(f"""
    s_cmp_eq_u32 {sHH}, 0
    s_cbranch_scc1 L_nostg
    """)
    for j in range(4):
        g(f'v_xor_b32 v9, {j << 13}, {V(aWS)}')
        g(f'global_load_dwordx4 {V(ST+4*j,4)}, v9, {pWUV} {nt}')
    g('L_nostg:')
    if o['touch']:
        g(f"""
        s_cmp_ge_u32 {sW}, 4
        s_cbranch_scc1 L_notch
        s_cmp_ge_u32 {sW}, 2
        s_cbranch_scc1 L_tch2
        s_lshl_b32 {t0}, {sR}, 17
        s_lshl_b32 {t1}, {sW}, 16
        s_add_u32 {t0}, {t0}, {t1}
        s_lshl_b32 {t1}, {sX}, 7
        s_add_u32 {t0}, {t0}, {t1}
        v_lshlrev_b32 v8, 10, {vL}
        v_add_u32 v9, {t0}, v8
        global_load_dword v20, v9, {pWO} {nt}
        s_mul_i32 {t0}, {sR}, {56*1024}
        s_add_u32 {t0}, {t0}, {t1}
        s_mul_i32 {t1}, {sW}, {28*1024}
        s_add_u32 {t0}, {t0}, {t1}
        v_min_u32 v8, {27*1024}, v8
        v_add_u32 v9, {t0}, v8
        global_load_dword v21, v9, {pWD} {nt}
        s_branch L_notch
        L_tch2:
        s_mul_i32 {t0}, {sR}, {16*3584}
        s_and_b32 {t1}, {sW}, 1
        s_mul_i32 {t1}, {t1}, {8*3584}
        s_add_u32 {t0}, {t0}, {t1}
        s_mul_i32 {t1}, {sX}, 448
        s_and_b32 {t1}, {t1}, 0xffffff80
        s_add_u32 {t0}, {t0}, {t1}
        v_bfe_u32 v8, {vL}, 2, 3
        v_mul_u32_u24 v8, 3584, v8
        v_and_b32 v9, 3, {vL}
        v_lshlrev_b32 v9, 7, v9
        v_add3_u32 v9, v8, v9, {t0}
        s_mov_b64 exec, 0xffffffff
        global_load_dword v20, v9, {pWG} {nt}
        global_load_dword v21, v9, {pWU} {nt}
        s_mov_b64 exec, -1
        L_notch:
        """)
    for t in range(16):
        g(f's_waitcnt lgkmcnt({14 if t == 0 else 15-t})')
        g(f'{MFMA} {V(SA,4)}, {V(SFR+4*t,4)}, {V(QFR+4*t,4)}, {V(SA,4) if t else 0}')
        if t == 0: g(f'ds_read_b128 {V(QFR+60,4)}, {V(AQ+3)} offset:768')
    g(f"""
    s_mov_b32 {t2}, {hex(f2i(SCALE))}
    v_max_f32 v8, {V(SA)}, {V(SA+1)}
    v_max3_f32 v8, v8, {V(SA+2)}, {V(SA+3)}
    v_mov_b32 v9, v8
    v_permlane16_swap_b32 v9, v8
    v_max_f32 v8, v8, v9
    v_mov_b32 v9, v8
    v_permlane32_swap_b32 v9, v8
    v_max_f32 v8, v8, v9
    ds_write_b32 {V(aMXw)}, v8
    s_waitcnt lgkmcnt(0)
    s_barrier
    """)
    g.stamp(8)
    def trd(ks, tau, a):
        return f'ds_read_b64_tr_b16 {V(QFR + (ks*4+tau)*4 + 2*a, 2)}, {V(AV + 8*(ks>>1) + 2*tau + a)} offset:{a*1024 + (ks&1)*32768}'
    trs = [(ks, tau, a) for ks in range(4) for tau in range(4) for a in range(2)]
    g(f"""
    ds_read_b128 {V(OA,4)}, {V(aMXr)}
    ds_read_b128 {V(OA+4,4)}, {V(aMXr)} offset:16
    """)
    for x in trs[:12]: g(trd(*x))
    g(f"""
    s_waitcnt lgkmcnt(12)
    v_max3_f32 v8, {V(OA)}, {V(OA+1)}, {V(OA+2)}
    v_max3_f32 v9, {V(OA+3)}, {V(OA+4)}, {V(OA+5)}
    v_max3_f32 v8, v8, {V(OA+6)}, {V(OA+7)}
    v_max_f32 v8, v8, v9
    v_mul_f32 v8, {t2}, v8
    v_fma_f32 v12, {V(SA)}, {t2}, -v8
    v_fma_f32 v13, {V(SA+1)}, {t2}, -v8
    v_fma_f32 v14, {V(SA+2)}, {t2}, -v8
    v_fma_f32 v15, {V(SA+3)}, {t2}, -v8
    v_exp_f32 v12, v12
    v_exp_f32 v13, v13
    v_exp_f32 v14, v14
    v_exp_f32 v15, v15
    v_cvt_pk_bf16_f32 v12, v12, v13
    v_cvt_pk_bf16_f32 v13, v14, v15
    ds_write_b64 {V(aPLw)}, v[12:13]
    s_cmp_lt_u32 {sW}, 4
    s_cbranch_scc1 L_b2
    s_mov_b32 {sCNT}, 0
    s_cmp_eq_u32 {sHH}, 0
    s_cbranch_scc1 L_fn0
    s_waitcnt vmcnt(4)
    s_branch L_fn
    L_fn0:
    s_waitcnt vmcnt(0)
    L_fn:
    v_cmp_ne_u32 vcc, {sTAG}, v16
    v_cmp_ne_u32 {sM}, {sTAG}, v18
    s_or_b64 vcc, vcc, {sM}
    s_cbranch_vccz L_b2
    s_add_u32 {sCNT}, {sCNT}, 1
    s_cmp_ge_u32 {sCNT}, {o['maxpoll']}
    s_cbranch_scc1 L_b2
    global_load_dwordx4 v[16:19], {V(aFN)}, {pWS} sc1
    s_branch L_fn0
    L_b2:
    s_waitcnt lgkmcnt(0)
    s_barrier
    """)
    g.stamp(9)
    seq = [('p', k) for k in range(4)] + [('t', x) for x in trs[12:]]
    issued = 0
    def issue(upto):
        nonlocal issued
        while issued < min(upto, len(seq)):
            kind, x = seq[issued]
            g(f'ds_read_b128 {V(PF+4*x,4)}, {V(aPLr)} offset:{64*x}' if kind == 'p' else trd(*x))
            issued += 1
    issue(14)
    g(f"""
    s_cmp_lg_u32 {sW}, 7
    s_cbranch_scc1 L_nol
    v_mov_b32 v12, 0x3f803f80
    v_mov_b32 v13, 0x3f803f80
    v_mov_b32 v14, 0x3f803f80
    v_mov_b32 v15, 0x3f803f80
    s_waitcnt lgkmcnt(10)
    """)
    for ks in range(4): g(f'{MFMA} {V(LA,4)}, v[12:15], {V(PF+4*ks,4)}, {V(LA,4) if ks else 0}')
    g('L_nol:')
    lastwait = None
    for ks in range(4):
        for tau in range(4):
            need = seq.index(('p', ks))
            if (ks, tau, 1) in trs[12:]: need = max(need, seq.index(('t', (ks, tau, 1))))
            cnt = issued - 1 - need
            if lastwait is None or need > lastwait:
                g(f's_waitcnt lgkmcnt({cnt})'); lastwait = need
            g(f'{MFMA} {V(OA+4*tau,4)}, {V(PF+4*ks,4)}, {V(QFR+(ks*4+tau)*4,4)}, {V(OA+4*tau,4) if ks else 0}')
            issue(min(len(seq), lastwait + 1 + 14))
        if ks == 0:
            g(f"""
            s_cmp_lg_u32 {sW}, 7
            s_cbranch_scc1 L_nosm
            v_mov_b32 v9, {V(LA)}
            s_mov_b64 exec, 0xffff
            global_store_dwordx2 {V(aSM)}, v[8:9], {pWS} sc1
            s_mov_b64 exec, -1
            L_nosm:
            """)
    for i in range(4):
        g(f'v_cvt_pk_bf16_f32 v{12+2*i}, {V(OA+i)}, {V(OA+4+i)}')
        g(f'v_cvt_pk_bf16_f32 v{13+2*i}, {V(OA+8+i)}, {V(OA+12+i)}')
        if i: g(f'v_add_u32 {V(aPT)}, 0x20000, {V(aPT)}')
        g(f'global_store_dwordx2 {V(aPT)}, {V(12+2*i,2)}, {pWS} sc1')
    g.stamp(10)
    g(f"""
    s_lshr_b32 {t3}, {sR}, 1
    s_barrier
    s_cmp_eq_u32 {sHH}, 1
    s_cbranch_scc1 L_x
    s_cmp_lt_u32 {t3}, 8
    s_cbranch_scc1 L_y
    s_sub_u32 {t3}, {t3}, 8
    s_cmp_lt_u32 {t3}, 4
    s_cbranch_scc1 L_f2
    s_sub_u32 {t3}, {t3}, 4
    s_branch L_f1
    """)
    WF, XD, A0, XA, CF = 64, 80, 96, 112, 116
    g("""
    L_x:
    s_waitcnt vmcnt(4)
    """)
    for j in range(4): g(f'ds_write_b128 {V(aWVw)}, {V(ST+4*j,4)} offset:{L_WV + j*1152}')
    g(f"""
    s_waitcnt lgkmcnt(0)
    s_barrier
    """)
    for t in range(4):
        for a in range(2):
            g(f'ds_read_b64_tr_b16 {V(WF+4*t+2*a,2)}, {V(aWVr)} offset:{L_WV + t*9216 + a*1152}')
    g(f"""
    s_cmp_ge_u32 {sW}, 2
    s_cbranch_scc1 L_bw
    """)
    lab = poll_begin(g, 'pm')
    g(f"""
    global_load_dwordx2 v[12:13], {V(aST)}, {pWS} sc1
    s_waitcnt vmcnt(0)
    """)
    check_sent(g, 'v14', ['v12', 'v13'])
    poll_end(g, lab)
    g('v_mov_b32 v14, v12')
    allreduce(g, 'v_max_f32', ['v14'], None, full=False)
    g(f"""
    v_mov_b32 v15, v14
    v_permlane16_swap_b32 v15, v14
    v_max_f32 v14, v14, v15
    v_sub_f32 v12, v12, v14
    v_exp_f32 v12, v12
    v_mul_f32 v13, v12, v13
    """)
    allreduce(g, 'v_add_f32', ['v13'], None, full=False)
    g(f"""
    v_mov_b32 v15, v13
    v_permlane16_swap_b32 v15, v13
    v_add_f32 v13, v13, v15
    v_rcp_f32 v13, v13
    v_mul_f32 v12, v12, v13
    v_cvt_pk_bf16_f32 v12, v12, v12
    ds_write_b16 {V(aWTw)}, v12
    L_bw:
    s_waitcnt lgkmcnt(0)
    s_barrier
    """)
    g.stamp(11)
    for u in range(4): g(f'global_load_dwordx4 {V(XD+4*u,4)}, {V(aDT)}, {pWS} offset:{u*256} sc1')
    g(f"""
    ds_read_b64 v[12:13], {V(aWTr)}
    s_mov_b32 {sCNT}, 0
    s_mov_b32 s44, -1
    s_mov_b32 s45, 0
    s_waitcnt lgkmcnt(0)
    """)
    for u in range(4):
        g(f'v_perm_b32 v14, v{12+(u>>1)}, v{12+(u>>1)}, {V(XS+(u&1))}')
        for j in range(4): g(f'v_and_b32 {V(A0+4*u+j)}, {V(XM+j)}, v14')
    g("""
    L_px:
    s_waitcnt vmcnt(0)
    """)
    check_sent(g, 'v14', [V(XD+k) for k in range(16)])
    g(f"""
    s_cbranch_vccz L_px_ok
    s_add_u32 {sCNT}, {sCNT}, 1
    s_cmp_ge_u32 {sCNT}, {o['maxpoll']}
    s_cbranch_scc1 L_px_ok
    {'s_mov_b64 exec, vcc' if o['mask'] else ''}
    {'s_sleep '+str(o['sleep']) if o['sleep'] else ''}
    """)
    for u in range(4): g(f'global_load_dwordx4 {V(XD+4*u,4)}, {V(aDT)}, {pWS} offset:{u*256} sc1')
    g("""
    s_branch L_px
    L_px_ok:
    s_mov_b64 exec, -1
    """)
    g.stamp(12)
    for u in range(4): g(f'{MFMA} {V(XA,4)}, {V(A0+4*u,4)}, {V(XD+4*u,4)}, {V(XA,4) if u else 0}')
    g(f"""
    v_cvt_pk_bf16_f32 v12, {V(XA)}, {V(XA+1)}
    v_cvt_pk_bf16_f32 v13, {V(XA+2)}, {V(XA+3)}
    s_mov_b64 exec, {sM}
    ds_write_b64 {V(aCCw)}, v[12:13]
    s_mov_b64 exec, -1
    s_waitcnt lgkmcnt(0)
    s_barrier
    """)
    for t in range(4): g(f'ds_read_b128 {V(CF+4*t,4)}, {V(aCCr)} offset:{64*t}')
    g("""
    s_mov_b32 s44, 0x55555555
    s_mov_b32 s45, 0x55555555
    """)
    for t in range(4):
        g(f's_waitcnt lgkmcnt({3-t})')
        g(f'{MFMA} {V(XA,4)}, {V(CF+4*t,4)}, {V(WF+4*t,4)}, {V(XA,4) if t else 0}')
    g(f"""
    v_add_f32 v12, {V(XA)}, {V(XA+1)}
    v_mov_b32_dpp v13, v12 quad_perm:[1,0,3,2] row_mask:0xf bank_mask:0xf
    v_cvt_pk_bf16_f32 v12, v12, v13
    s_mov_b64 exec, {sM}
    global_store_dword {V(aCT)}, v12, {pWS} sc1
    s_mov_b64 exec, -1
    """)
    g.stamp(13)
    g(f"""
    s_cmp_ge_u32 {t3}, 10
    s_cbranch_scc1 L_end
    s_add_u32 {t3}, {t3}, 4
    s_branch L_f1
    """)
    BF, YD, YA = 64, 96, 104
    g(f"""
    L_y:
    s_lshl_b32 {t0}, {t3}, 19
    s_lshl_b32 {t1}, {sW}, 16
    s_add_u32 {t0}, {t0}, {t1}
    s_lshl_b32 {t1}, {sX}, 7
    s_add_u32 {t0}, {t0}, {t1}
    v_lshrrev_b32 v8, 3, {vL}
    v_and_b32 v9, 2, v8
    v_and_b32 v10, 7, {vL}
    v_xor_b32 v9, v9, v10
    v_lshlrev_b32 v9, 4, v9
    v_lshl_add_u32 v8, v8, 10, v9
    v_add_u32 v8, {t0}, v8
    s_lshl_b32 {t2}, {sW}, 13
    s_add_u32 {t2}, {t2}, {L_ROLE}
    """)
    for i in range(8):
        g(f's_add_u32 m0, {t2}, {i*1024}')
        g(f'v_xor_b32 v9, {hex((i << 13) | ((i & 1) << 6))}, v8')
        g(f'global_load_lds_dwordx4 v9, {pWO} {nt}')
    g(f"""
    v_bfe_u32 v8, {vL}, 2, 2
    v_and_b32 v9, 2, v8
    v_and_b32 v10, 1, {vG}
    v_lshl_add_u32 v9, v10, 2, v9
    v_bfe_u32 v10, {vL}, 1, 1
    v_xor_b32 v9, v9, v10
    v_lshlrev_b32 v9, 4, v9
    v_lshl_add_u32 v8, {vG}, 3, v8
    v_lshl_add_u32 v9, v8, 7, v9
    v_and_b32 v10, 1, {vL}
    v_lshl_add_u32 v9, v10, 3, v9
    v_add_u32 v12, {t2}, v9
    v_xor_b32 v13, 32, v12
    v_xor_b32 v14, 64, v12
    v_xor_b32 v15, 96, v12
    s_lshl_b32 {t0}, {t3}, 14
    s_lshr_b32 {t1}, {sW}, 1
    s_lshl_b32 {t1}, {t1}, 12
    s_add_u32 {t0}, {t0}, {t1}
    s_and_b32 {t1}, {sW}, 1
    s_lshl_b32 {t1}, {t1}, 9
    s_add_u32 {t0}, {t0}, {t1}
    s_add_u32 {t0}, {t0}, {WS_CTX}
    v_lshrrev_b32 v8, 2, {vN}
    v_lshlrev_b32 v8, 10, v8
    v_lshl_add_u32 v8, {vG}, 6, v8
    v_and_b32 v9, 3, {vN}
    v_lshl_add_u32 v8, v9, 4, v8
    v_add_u32 v26, {t0}, v8
    s_lshl_b32 {t0}, {sW}, 10
    s_add_u32 {t0}, {t0}, {L_RED}
    v_lshlrev_b32 v8, 4, {vL}
    v_add_u32 v27, {t0}, v8
    s_lshl_b32 {t0}, {sW}, 2
    s_add_u32 {t0}, {t0}, {L_RED}
    v_add_u32 v28, {t0}, v8
    s_lshl_b32 {t0}, {sX}, 12
    s_lshl_b32 {t1}, {t3}, 9
    s_add_u32 {t0}, {t0}, {t1}
    s_lshl_b32 {t1}, {sW}, 7
    s_add_u32 {t0}, {t0}, {t1}
    s_add_u32 {t0}, {t0}, {WS_HPART}
    v_lshlrev_b32 v8, 1, {vL}
    v_add_u32 v29, {t0}, v8
    s_waitcnt vmcnt(0)
    """)
    for T in range(2):
        for tau in range(4):
            for a in range(2):
                g(f'ds_read_b64_tr_b16 {V(BF+(T*4+tau)*4+2*a,2)}, v{12+tau} offset:{T*4096 + a*512}')
    g.stamp(13)
    lab = poll_begin(g, 'py')
    g(f"""
    global_load_dwordx4 {V(YD,4)}, v26, {pWS} sc1
    global_load_dwordx4 {V(YD+4,4)}, v26, {pWS} offset:256 sc1
    s_waitcnt vmcnt(0)
    """)
    check_sent(g, 'v8', [V(YD+k) for k in range(8)])
    poll_end(g, lab)
    g.stamp(14)
    g('s_waitcnt lgkmcnt(0)')
    for T in range(2):
        for tau in range(4):
            g(f'{MFMA} {V(YA+4*tau,4)}, {V(YD+4*T,4)}, {V(BF+(T*4+tau)*4,4)}, {V(YA+4*tau,4) if T else 0}')
    for i in range(4): g(f'v_permlane16_swap_b32 {V(YA+i)}, {V(YA+4+i)}')
    for i in range(4): g(f'v_permlane16_swap_b32 {V(YA+8+i)}, {V(YA+12+i)}')
    for i in range(4): g(f'v_add_f32 {V(YA+i)}, {V(YA+i)}, {V(YA+4+i)}')
    for i in range(4): g(f'v_add_f32 {V(YA+8+i)}, {V(YA+8+i)}, {V(YA+12+i)}')
    for i in range(4): g(f'v_permlane32_swap_b32 {V(YA+i)}, {V(YA+8+i)}')
    for i in range(4): g(f'v_add_f32 v{8+i}, {V(YA+i)}, {V(YA+8+i)}')
    g(f"""
    ds_write_b128 v27, v[8:11]
    s_waitcnt lgkmcnt(0)
    s_barrier
    s_cmp_ge_u32 {sW}, 4
    s_cbranch_scc1 L_end
    """)
    for k in range(4): g(f'ds_read2st64_b32 {V(8+2*k,2)}, v28 offset0:{8*k} offset1:{8*k+4}')
    g(f"""
    s_mov_b32 s44, 0x55555555
    s_mov_b32 s45, 0x55555555
    s_waitcnt lgkmcnt(2)
    v_add_f32 v8, v8, v9
    v_add_f32 v10, v10, v11
    s_waitcnt lgkmcnt(0)
    v_add_f32 v12, v12, v13
    v_add_f32 v14, v14, v15
    v_add_f32 v8, v8, v10
    v_add_f32 v12, v12, v14
    v_add_f32 v8, v8, v12
    v_mov_b32_dpp v9, v8 quad_perm:[1,0,3,2] row_mask:0xf bank_mask:0xf
    v_cvt_pk_bf16_f32 v8, v8, v9
    s_mov_b64 exec, {sM}
    global_store_dword v29, v8, {pWS} sc1
    s_mov_b64 exec, -1
    """)
    g.stamp(15)
    g('s_branch L_end')
    WB, HD, SA_, SB_, H0, AF, DG = 64, 96, 128, 132, 136, 144, 172
    def h_prep():
        g(f'''
        s_lshl_b32 {t0}, {sW}, 10
        v_lshrrev_b32 v8, 1, {vG}
        v_lshlrev_b32 v8, 8, v8
        v_lshl_add_u32 v8, {vN}, 4, v8
        v_and_b32 v9, 1, {vG}
        v_lshl_add_u32 v30, v9, 3, v8
        v_add_u32 v8, {t0}, v30
        global_load_dwordx2 v[16:17], v8, {pX}
        global_load_dwordx2 v[18:19], v8, {pX} offset:512
        v_and_b32 v9, 1, {vN}
        v_cmp_eq_u32 vcc, 1, v9
        v_mov_b32 v10, 0x3f80
        v_mov_b32 v11, 0x3f800000
        v_cndmask_b32 v10, v10, v11, vcc
        v_lshrrev_b32 v9, 1, {vN}
        ''')
        for j in range(8):
            g(f'v_cmp_eq_u32 vcc, {j}, v9')
            g(f'v_cndmask_b32 {V(SA_+j)}, 0, v10, vcc')
        g(f'''
        s_lshl_b32 {t0}, {sW}, 7
        s_add_u32 {t0}, {t0}, {WS_HPART}
        v_lshrrev_b32 v8, 3, {vN}
        v_lshlrev_b32 v8, 12, v8
        v_lshl_add_u32 v8, {vG}, 9, v8
        v_and_b32 v9, 7, {vN}
        v_lshl_add_u32 v8, v9, 4, v8
        v_add_u32 v26, {t0}, v8
        v_add_u32 v27, 0x2000, v26
        v_add_u32 v28, 0x4000, v26
        v_add_u32 v29, 0x6000, v26
        s_waitcnt vmcnt(0)
        ''')
        for al in range(2):
            for k in range(2):
                g(f'v_lshlrev_b32 {V(H0+4*al+2*k)}, 16, v{16+2*al+k}')
                g(f'v_and_b32 {V(H0+4*al+2*k+1)}, 0xffff0000, v{16+2*al+k}')
    def h_gather():
        if o['isleep'] >= 0:
            g(f'''
            s_and_b32 {t0}, {t3}, 7
            s_lshl_b32 {t0}, {t0}, 12
            s_lshl_b32 {t1}, {sW}, 7
            s_add_u32 {t0}, {t0}, {t1}
            s_add_u32 {t0}, {t0}, {WS_HPART}
            v_and_b32 v9, 7, {vL}
            v_lshlrev_b32 v9, 9, v9
            v_add_u32 v9, {t0}, v9
            ''')
            lab = poll_begin(g, 'pi')
            g(f'''
            global_load_dword v10, v9, {pWS} sc1
            s_waitcnt vmcnt(0)
            v_cmp_eq_u32 vcc, -1, v10
            ''')
            poll_end(g, lab, o['isleep'])
        lab = poll_begin(g, 'ph')
        for tau in range(4):
            for u in range(2):
                g(f'global_load_dwordx4 {V(HD+8*tau+4*u,4)}, v{26+tau}, {pWS} offset:{u*2048} sc1')
        g('s_waitcnt vmcnt(0)')
        check_sent(g, 'v8', [V(HD+k) for k in range(32)])
        poll_end(g, lab)
        for k in range(4):
            for al in range(2):
                tau = 2*al + (k >> 1)
                g(f'{MFMA} {V(H0+4*al,4)}, {V(SA_ + 4*(k>>1),4)}, {V(HD+8*tau+4*(k&1),4)}, {V(H0+4*al,4)}')
    g(f'''
    L_f1:
    s_mul_i32 {t0}, {sX}, 14
    s_add_u32 {t3}, {t3}, {t0}
    s_mul_i32 {t0}, {sW}, {64*3584}
    s_lshl_b32 {t1}, {t3}, 5
    s_add_u32 {t0}, {t0}, {t1}
    v_lshrrev_b32 v8, 1, {vL}
    v_mul_u32_u24 v8, 3584, v8
    v_and_b32 v9, 1, {vL}
    v_lshl_add_u32 v8, v9, 4, v8
    v_add_u32 v8, {t0}, v8
    v_add_u32 v9, {32*3584}, v8
    s_lshl_b32 {t2}, {sW}, 13
    s_add_u32 {t2}, {t2}, {L_ROLE}
    ''')
    for mat in range(2):
        for j in range(2):
            g(f's_add_u32 m0, {t2}, {(mat*2+j)*1024}')
            g(f'global_load_lds_dwordx4 v{8+j}, {pWU if mat else pWG} {nt}')
    g(f'''
    v_bfe_u32 v8, {vL}, 2, 2
    v_lshl_add_u32 v8, {vG}, 3, v8
    v_lshlrev_b32 v8, 5, v8
    v_and_b32 v9, 3, {vL}
    v_lshl_add_u32 v8, v9, 3, v8
    v_add_u32 v31, {t2}, v8
    v_and_b32 v8, 3, {vN}
    v_mul_u32_u24 v8, 1088, v8
    v_lshl_add_u32 v8, {vG}, 4, v8
    s_lshl_b32 {t0}, {sW}, 7
    s_add_u32 {t0}, {t0}, {L_HN}
    v_add_u32 v32, {t0}, v8
    s_lshl_b32 {t0}, {sW}, 9
    s_add_u32 {t0}, {t0}, {L_RED}
    v_lshlrev_b32 v8, 4, {vN}
    v_add_u32 v33, {t0}, v8
    v_lshl_add_u32 v8, {vG}, 2, v8
    v_add_u32 v34, {L_RED}, v8
    s_lshl_b32 {t0}, {t3}, 7
    s_add_u32 {t0}, {t0}, {WS_ACT}
    v_lshrrev_b32 v8, 3, {vN}
    v_lshlrev_b32 v8, 6, v8
    v_lshl_add_u32 v8, {vG}, 4, v8
    v_and_b32 v9, 7, {vN}
    v_lshl_add_u32 v8, v9, 1, v8
    v_add_u32 v35, {t0}, v8
    s_cmp_ge_u32 {sW}, 4
    s_cbranch_scc1 L_f1_w
    ''')
    h_prep()
    g(f'''
    s_mul_i32 {t0}, {sW}, 1088
    s_add_u32 {t0}, {t0}, {L_HN}
    v_add_u32 v30, {t0}, v30
    L_f1_w:
    s_waitcnt vmcnt(0)
    ''')
    for mat in range(2):
        for j in range(2):
            for a in range(2):
                g(f'ds_read_b64_tr_b16 {V(WB+(mat*2+j)*4+2*a,2)}, v31 offset:{(mat*2+j)*1024 + a*128}')
    g.stamp(13)
    g(f'''
    s_cmp_ge_u32 {sW}, 4
    s_cbranch_scc1 L_f1_b
    ''')
    h_gather()
    g.stamp(14)
    g(f'''
    v_add_f32 v8, {V(H0)}, {V(H0+1)}
    v_mul_f32 v9, {V(H0)}, {V(H0)}
    v_add_f32 v10, {V(H0+2)}, {V(H0+3)}
    v_fmac_f32 v9, {V(H0+1)}, {V(H0+1)}
    v_add_f32 v11, {V(H0+4)}, {V(H0+5)}
    v_fmac_f32 v9, {V(H0+2)}, {V(H0+2)}
    v_add_f32 v12, {V(H0+6)}, {V(H0+7)}
    v_fmac_f32 v9, {V(H0+3)}, {V(H0+3)}
    v_add_f32 v8, v8, v10
    v_fmac_f32 v9, {V(H0+4)}, {V(H0+4)}
    v_add_f32 v11, v11, v12
    v_fmac_f32 v9, {V(H0+5)}, {V(H0+5)}
    v_add_f32 v8, v8, v11
    v_fmac_f32 v9, {V(H0+6)}, {V(H0+6)}
    v_fmac_f32 v9, {V(H0+7)}, {V(H0+7)}
    ''')
    allreduce(g, 'v_add_f32', ['v8', 'v9'], ['v10', 'v11'])
    g(f'''
    v_mul_f32 v8, {hex(f2i(1/512))}, v8
    v_mul_f32 v9, {hex(f2i(1/512))}, v9
    v_fma_f32 v9, -v8, v8, v9
    v_max_f32 v9, 0, v9
    v_add_f32 v9, {hex(f2i(1e-5))}, v9
    v_rsq_f32 v9, v9
    ''')
    for k in range(8): g(f'v_sub_f32 v{12+k}, {V(H0+k)}, v8')
    for k in range(8): g(f'v_mul_f32 v{12+k}, v{12+k}, v9')
    for k in range(4): g(f'v_cvt_pk_bf16_f32 v{12+k}, v{12+2*k}, v{13+2*k}')
    g(f'''
    ds_write_b64 v30, v[12:13]
    ds_write_b64 v30, v[14:15] offset:512
    L_f1_b:
    s_waitcnt lgkmcnt(0)
    s_barrier
    ds_read_b128 {V(AF,4)}, v32
    ds_read_b128 {V(AF+4,4)}, v32 offset:64
    s_waitcnt lgkmcnt(1)
    {MFMA} {V(DG,4)}, {V(AF,4)}, {V(WB,4)}, 0
    {MFMA} {V(DG+4,4)}, {V(AF,4)}, {V(WB+8,4)}, 0
    s_waitcnt lgkmcnt(0)
    {MFMA} {V(DG,4)}, {V(AF+4,4)}, {V(WB+4,4)}, {V(DG,4)}
    {MFMA} {V(DG+4,4)}, {V(AF+4,4)}, {V(WB+12,4)}, {V(DG+4,4)}
    s_mov_b64 exec, 0xffff
    ds_write_b128 v33, {V(DG,4)}
    ds_write_b128 v33, {V(DG+4,4)} offset:256
    s_mov_b64 exec, -1
    s_waitcnt lgkmcnt(0)
    s_barrier
    s_cmp_lg_u32 {sW}, 0
    s_cbranch_scc1 L_end
    ''')
    for k in range(8): g(f'ds_read2st64_b32 {V(8+2*k,2)}, v34 offset0:{2*k} offset1:{2*k+1}')
    C1 = -2 * 1.4426950408889634 * 0.7978845608028654
    g(f'''
    s_mov_b32 s44, 0x55555555
    s_mov_b32 s45, 0x55555555
    s_mov_b32 {t0}, {hex(f2i(C1*0.044715))}
    v_mov_b32 v24, {hex(f2i(C1))}
    s_waitcnt lgkmcnt(4)
    v_add_f32 v8, v8, v10
    v_add_f32 v9, v9, v11
    v_add_f32 v12, v12, v14
    v_add_f32 v13, v13, v15
    s_waitcnt lgkmcnt(0)
    v_add_f32 v16, v16, v18
    v_add_f32 v20, v20, v22
    v_add_f32 v8, v8, v12
    v_add_f32 v16, v16, v20
    v_add_f32 v17, v17, v19
    v_add_f32 v8, v8, v16
    v_add_f32 v21, v21, v23
    v_mul_f32 v10, v8, v8
    v_add_f32 v9, v9, v13
    v_fma_f32 v10, v10, {t0}, v24
    v_add_f32 v17, v17, v21
    v_mul_f32 v10, v10, v8
    v_add_f32 v9, v9, v17
    v_exp_f32 v10, v10
    v_mul_f32 v8, v8, v9
    v_add_f32 v10, 1.0, v10
    v_rcp_f32 v10, v10
    v_mul_f32 v8, v8, v10
    v_mov_b32_dpp v9, v8 quad_perm:[1,0,3,2] row_mask:0xf bank_mask:0xf
    v_cvt_pk_bf16_f32 v8, v8, v9
    s_mov_b64 exec, {sM}
    global_store_dword v35, v8, {pWS} sc1
    s_mov_b64 exec, -1
    ''')
    g.stamp(15)
    g('s_branch L_end')
    g(f'''
    L_f2:
    s_lshl_b32 {t0}, {sX}, 2
    s_add_u32 {t3}, {t3}, {t0}
    s_mul_i32 {t0}, {sW}, {224*1024}
    s_lshl_b32 {t1}, {t3}, 5
    s_add_u32 {t0}, {t0}, {t1}
    v_lshrrev_b32 v8, 1, {vL}
    v_lshlrev_b32 v8, 10, v8
    v_and_b32 v9, 1, {vL}
    v_lshl_add_u32 v8, v9, 4, v8
    v_add_u32 v8, {t0}, v8
    s_lshl_b32 {t2}, {sW}, 13
    s_add_u32 {t2}, {t2}, {L_ROLE}
    ''')
    for j in range(7):
        g(f's_add_u32 m0, {t2}, {j*1024}')
        if j: g(f'v_add_u32 v8, 0x8000, v8')
        g(f'global_load_lds_dwordx4 v8, {pWD} {nt}')
    g(f'''
    v_bfe_u32 v8, {vL}, 2, 2
    v_lshl_add_u32 v8, {vG}, 3, v8
    v_lshlrev_b32 v8, 5, v8
    v_and_b32 v9, 3, {vL}
    v_lshl_add_u32 v8, v9, 3, v8
    v_add_u32 v31, {t2}, v8
    s_mul_i32 {t0}, {sW}, 1792
    s_add_u32 {t0}, {t0}, {WS_ACT}
    v_and_b32 v8, 3, {vN}
    v_lshlrev_b32 v8, 4, v8
    v_lshl_add_u32 v8, {vG}, 6, v8
    v_add_u32 v32, {t0}, v8
    s_lshl_b32 {t0}, {sW}, 8
    s_add_u32 {t0}, {t0}, {L_RED}
    v_lshlrev_b32 v8, 4, {vN}
    v_add_u32 v33, {t0}, v8
    v_lshl_add_u32 v8, {vG}, 2, v8
    v_add_u32 v34, {L_RED}, v8
    s_lshl_b32 {t0}, {t3}, 6
    s_add_u32 {t0}, {t0}, {L_H32}
    v_lshlrev_b32 v8, 11, {vG}
    v_lshl_add_u32 v8, {vN}, 2, v8
    v_add_u32 v35, {t0}, v8
    s_lshl_b32 {t0}, {t3}, 5
    v_lshlrev_b32 v8, 10, {vG}
    v_lshl_add_u32 v8, {vN}, 1, v8
    v_add_u32 v36, {t0}, v8
    s_cmp_ge_u32 {sW}, 4
    s_cbranch_scc1 L_f2_w
    ''')
    h_prep()
    g(f'''
    s_lshl_b32 {t0}, {sW}, 11
    s_add_u32 {t0}, {t0}, {L_H32}
    v_lshlrev_b32 v30, 1, v30
    v_add_u32 v30, {t0}, v30
    L_f2_w:
    s_waitcnt vmcnt(0)
    ''')
    for j in range(7):
        for a in range(2):
            g(f'ds_read_b64_tr_b16 {V(WB+4*j+2*a,2)}, v31 offset:{j*1024 + a*128}')
    g.stamp(13)
    g(f'''
    s_cmp_ge_u32 {sW}, 4
    s_cbranch_scc1 L_f2_a
    ''')
    h_gather()
    g(f'''
    ds_write_b128 v30, {V(H0,4)}
    ds_write_b128 v30, {V(H0+4,4)} offset:1024
    L_f2_a:
    s_barrier
    ''')
    g.stamp(12)
    lab = poll_begin(g, 'pa')
    for j in range(7): g(f'global_load_dwordx4 {V(AF+4*j,4)}, v32, {pWS} offset:{j*256} sc1')
    g('s_waitcnt vmcnt(0)')
    check_sent(g, 'v8', [V(AF+k) for k in range(28)])
    poll_end(g, lab)
    g.stamp(14)
    g('s_waitcnt lgkmcnt(0)')
    for j in range(7): g(f'{MFMA} {V(DG,4)}, {V(AF+4*j,4)}, {V(WB+4*j,4)}, {V(DG,4) if j else 0}')
    g(f'''
    s_mov_b64 exec, 0xffff
    ds_write_b128 v33, {V(DG,4)}
    s_mov_b64 exec, -1
    s_waitcnt lgkmcnt(0)
    s_barrier
    s_cmp_lg_u32 {sW}, 0
    s_cbranch_scc1 L_end
    ''')
    for k in range(4): g(f'ds_read2st64_b32 {V(8+2*k,2)}, v34 offset0:{2*k} offset1:{2*k+1}')
    g(f'''
    ds_read_b32 v16, v35
    s_mov_b32 s44, 0x55555555
    s_mov_b32 s45, 0x55555555
    s_waitcnt lgkmcnt(3)
    v_add_f32 v8, v8, v9
    v_add_f32 v10, v10, v11
    s_waitcnt lgkmcnt(0)
    v_add_f32 v12, v12, v13
    v_add_f32 v14, v14, v15
    v_add_f32 v8, v8, v10
    v_add_f32 v12, v12, v14
    v_add_f32 v8, v8, v16
    v_add_f32 v8, v8, v12
    v_mov_b32_dpp v9, v8 quad_perm:[1,0,3,2] row_mask:0xf bank_mask:0xf
    v_cvt_pk_bf16_f32 v8, v8, v9
    s_mov_b64 exec, {sM}
    global_store_dword v36, v8, {pOUT}
    s_cmp_lg_u32 {t3}, 0
    s_cbranch_scc1 L_noep
    s_mov_b64 exec, 1
    v_mov_b32 v10, {WS_EPOCH}
    v_mov_b32 v11, {sTAG}
    global_store_dword v10, v11, {pWS} sc1
    L_noep:
    s_mov_b64 exec, -1
    ''')
    g.stamp(15)
    g('L_end:')
    if o['stamps']:
        g('s_waitcnt lgkmcnt(0)')
        for k in range(16): g(f'v_writelane_b32 v4, s{64+2*k}, {k}')
        g(f'''
        s_lshl_b32 {t0}, s2, 3
        s_add_u32 {t0}, {t0}, {sW}
        s_lshl_b32 {t0}, {t0}, 6
        s_add_u32 {t0}, {t0}, {WS_STAMP}
        v_lshlrev_b32 v5, 2, {vL}
        v_add_u32 v5, {t0}, v5
        s_mov_b64 exec, 0xffff
        global_store_dword v5, v4, {pWS}
        ''')
    g('L_exit:')
    g('s_endpgm')
    body, nadd = hazfix.fix('\n'.join(g.L))
    head = f'''; Fused pre-LN compressed-KV attention + GEGLU FFN decode step, one persistent launch (256 workgroups).
; @launch grid=(256,1,1) block=(512,1,1) lds={LDS_BYTES}
.amdgcn_target "amdgcn-amd-amdhsa--gfx950"
.text
.globl {NAME}
.p2align 8
.type {NAME},@function
{NAME}:
'''
    tail = f'''
.section .rodata,"a"
.p2align 6
.amdhsa_kernel {NAME}
  .amdhsa_next_free_vgpr 256
  .amdhsa_next_free_sgpr {96 if o['stamps'] else 48}
  .amdhsa_accum_offset 256
  .amdhsa_group_segment_fixed_size 0
  .amdhsa_kernarg_size 104
  .amdhsa_user_sgpr_count 2
  .amdhsa_user_sgpr_kernarg_segment_ptr 1
  .amdhsa_system_sgpr_workgroup_id_x 1
.end_amdhsa_kernel
'''
    return head + body + tail

if __name__ == '__main__':
    opt = {}
    for a in sys.argv[2:]:
        k, v = a.split('=')
        opt[k] = int(v) if v.lstrip('-').isdigit() else v
    open(sys.argv[1], 'w').write(gen(opt))
```

```python
import sys, struct
import hazfix

NAME = 'sequential_preLN__compressed_kv_cla__geglu_ffn__decode_kernel'

WS_EPOCH = 0
WS_FLAGP = 0x1000
WS_FLAGN = 0x2000
WS_QABS  = 0x10000
WS_CLR   = 0x100000
WS_PART  = WS_CLR
WS_STAT  = WS_PART + 0x400000
WS_CTX   = WS_STAT + 0x8000
WS_HPART = WS_CTX + 0x20000
WS_ACT   = WS_HPART + 0x8000
CLR_PER  = 34 * 1024
WS_STAMP = 0x800000

L_CKV = 0
L_QA  = 0x20000
L_PL  = 0x24000
L_MX  = 0x25200
L_XN  = 0x25800
L_Q   = 0x26800
L_CC  = 0x27000
L_WT  = 0x27900
LDS_BYTES = 0x28000
L_WV   = 0
L_ROLE = 40960
L_RED  = L_QA
L_HN   = L_QA + 0x2000
L_H32  = L_QA + 0x2000

def f2i(x): return struct.unpack('<I', struct.pack('<f', x))[0]
SCALE = (128 ** -0.5) * 1.4426950408889634

class G:
    def __init__(self, opt):
        self.o = opt
        self.L = []
        self.nst = 0
        self.uid = 0
    def __call__(self, s):
        for line in s.strip('\n').split('\n'):
            line = line.rstrip()
            if not line.strip(): continue
            t = line.strip()
            self.L.append(t if t.endswith(':') else '    ' + t)
    def lab(self, p):
        self.uid += 1
        return f'L_{p}{self.uid}'
    def stamp(self, k):
        if self.o.get('stamps'):
            self(f's_memrealtime s[{64+2*k}:{65+2*k}]')

pX, pCKV, pWQ, pWUK, pWUV, pWO, pWG, pWU, pWD, pOUT, pWS = ('s[4:5]','s[6:7]','s[8:9]','s[10:11]','s[12:13]','s[14:15]','s[18:19]','s[20:21]','s[22:23]','s[24:25]','s[28:29]')
sW, sX, sR, sTAG, sCNT = 's3', 's30', 's31', 's32', 's33'
sB, sHH, sS, sH, sCQ = 's34', 's35', 's36', 's37', 's38'
t0, t1, t2, t3 = 's40', 's41', 's42', 's43'
sM = 's[44:45]'
vL, vN, vG = 'v1', 'v2', 'v3'
def V(a, n=1): return f'v{a}' if n == 1 else f'v[{a}:{a+n-1}]'
MFMA = 'v_mfma_f32_16x16x32_bf16'

def allreduce(g, op, regs, tmps, full=True):
    for k in (1, 2, 4, 8):
        for r in regs:
            g(f'{op}_dpp {r}, {r}, {r} row_ror:{k} row_mask:0xf bank_mask:0xf')
    if full:
        for sw in ('v_permlane16_swap_b32', 'v_permlane32_swap_b32'):
            for r, t in zip(regs, tmps): g(f'v_mov_b32 {t}, {r}')
            for r, t in zip(regs, tmps): g(f'{sw} {t}, {r}')
            for r, t in zip(regs, tmps): g(f'{op} {r}, {r}, {t}')

def rne(g, r):
    g(f'v_cvt_pk_bf16_f32 {r}, {r}, {r}')
    g(f'v_and_b32 {r}, 0xffff0000, {r}')

def poll_begin(g, name):
    lab = g.lab(name)
    g(f's_mov_b32 {sCNT}, 0')
    g(f'{lab}:')
    return lab
def poll_end(g, lab, sleep=None):
    done = lab + '_ok'
    if sleep is None: sleep = g.o.get('sleep', 0)
    g(f"""
    s_cbranch_vccz {done}
    {'s_mov_b64 exec, vcc' if g.o['mask'] else ''}
    {'s_sleep '+str(sleep) if sleep else ''}
    s_add_u32 {sCNT}, {sCNT}, 1
    s_cmp_lt_u32 {sCNT}, {g.o.get('maxpoll', 65536)}
    s_cbranch_scc1 {lab}
    {done}:
    {'s_mov_b64 exec, -1' if g.o['mask'] else ''}
    """)
def check_sent(g, tmp, regs):
    regs = list(regs)
    if len(regs) == 1:
        g(f'v_cmp_eq_u32 vcc, -1, {regs[0]}'); return
    if len(regs) == 2:
        g(f'v_max_u32 {tmp}, {regs[0]}, {regs[1]}'); rest = []
    else:
        g(f'v_max3_u32 {tmp}, {regs[0]}, {regs[1]}, {regs[2]}'); rest = regs[3:]
    while rest:
        if len(rest) >= 2:
            g(f'v_max3_u32 {tmp}, {tmp}, {rest[0]}, {rest[1]}'); rest = rest[2:]
        else:
            g(f'v_max_u32 {tmp}, {tmp}, {rest[0]}'); rest = []
    g(f'v_cmp_eq_u32 vcc, -1, {tmp}')

sLDB = 's39'
aCK = 25
def ckv_addr(g):
    g(f"""
    s_lshl_b32 {t0}, {sB}, 22
    s_lshl_b32 {t1}, {sS}, 17
    s_add_u32 {t0}, {t0}, {t1}
    s_lshl_b32 {sLDB}, {sW}, 15
    s_add_u32 {t0}, {t0}, {sLDB}
    v_lshlrev_b32 v8, 4, {vL}
    v_add_u32 {V(aCK)}, {t0}, v8
    """)
def ckv_dma(g, groups, rev):
    nt = g.o['nt']
    for j in groups:
        g(f's_add_u32 m0, {sLDB}, {j*4096}')
        for q in (range(3, -1, -1) if rev else range(4)):
            i = 4*j + q
            f = (i & 15) ^ ((i & 1) << 3)
            g(f'v_xor_b32 v9, {hex((j << 12) | (f << 4))}, {V(aCK)}')
            g(f'global_load_lds_dwordx4 v9, {pCKV} offset:{q*1024} {nt}')
def tag(g):
    g(f"""
    s_mul_i32 {sTAG}, {sTAG}, 0x19660d
    s_add_u32 {sTAG}, {sTAG}, 0x3c6ef35f
    """)

AQ, AS, AV = 26, 30, 34
aMXw, aMXr, aPLw, aPLr, aPT, aSM, aGQ, aQW, aFN = 50, 51, 52, 53, 54, 55, 56, 57, 61
aWS, aWVw, aWVr, aST, aDT, aCCw, aCCr, aCT, aWTw, aWTr = 62, 63, 248, 249, 250, 251, 252, 253, 254, 255
XM, XS = 4, 22
QFR, SFR, SA, PF, OA, LA, ST = 64, 128, 192, 196, 212, 228, 232
GQ = PF

def setup_att(g):
    g(f"""
    L_setup:
    v_xor_b32 v8, {vN}, {vG}
    v_lshlrev_b32 v8, 4, v8
    v_lshl_add_u32 v8, {vN}, 10, v8
    v_add_u32 {V(AQ)}, {L_QA}, v8
    v_xor_b32 {V(AQ+1)}, 64, {V(AQ)}
    v_xor_b32 {V(AQ+2)}, 128, {V(AQ)}
    v_xor_b32 {V(AQ+3)}, 192, {V(AQ)}
    v_and_b32 v8, 8, {vN}
    v_and_b32 v9, 3, {vN}
    v_lshl_add_u32 v8, v9, 1, v8
    v_bfe_u32 v9, {vN}, 2, 1
    v_add_u32 v8, v8, v9
    v_lshlrev_b32 v9, 3, v9
    v_xor_b32 v9, v9, v8
    v_xor_b32 v9, v9, {vG}
    v_lshlrev_b32 v9, 4, v9
    v_lshl_add_u32 v9, v8, 10, v9
    s_lshl_b32 {t0}, {sW}, 14
    v_add_u32 {V(AS)}, {t0}, v9
    v_xor_b32 {V(AS+1)}, 64, {V(AS)}
    v_xor_b32 {V(AS+2)}, 128, {V(AS)}
    v_xor_b32 {V(AS+3)}, 192, {V(AS)}
    v_bfe_u32 v8, {vL}, 2, 2
    v_lshlrev_b32 v8, 1, v8
    v_lshl_add_u32 v9, {vG}, 3, v8
    v_and_b32 v10, 15, v9
    v_bfe_u32 v11, {vL}, 1, 1
    s_lshl_b32 {t0}, {sW}, 3
    v_add_u32 v11, {t0}, v11
    v_xor_b32 v10, v10, v11
    v_lshlrev_b32 v10, 4, v10
    v_lshl_add_u32 v10, v9, 10, v10
    v_and_b32 v11, 1, {vL}
    v_lshl_add_u32 v10, v11, 3, v10
    """)
    for tau in range(4):
        for a in range(2):
            k = 2*tau + a
            g(f'v_xor_b32 {V(AV+k)}, {hex(((2*tau) ^ (9*a)) << 4)}, v10')
            g(f'v_xor_b32 {V(AV+8+k)}, {hex((((2*tau) ^ (9*a)) << 4) | 0x10000)}, v10')
    g(f"""
    s_lshl_b32 {t0}, {sW}, 2
    s_add_u32 {t0}, {t0}, {L_MX}
    v_lshlrev_b32 v8, 5, {vN}
    v_add_u32 {V(aMXw)}, {t0}, v8
    v_add_u32 {V(aMXr)}, {L_MX}, v8
    v_mul_u32_u24 v8, 272, {vN}
    v_add_u32 v8, {L_PL}, v8
    v_lshl_add_u32 {V(aPLr)}, {vG}, 4, v8
    v_lshl_add_u32 v8, {vG}, 3, v8
    s_lshl_b32 {t0}, {sW}, 5
    v_add_u32 {V(aPLw)}, {t0}, v8
    s_lshl_b32 {t0}, {sHH}, 21
    s_lshr_b32 {t1}, {sW}, 1
    s_lshl_b32 {t1}, {t1}, 15
    s_add_u32 {t0}, {t0}, {t1}
    s_lshl_b32 {t1}, {sB}, 13
    s_add_u32 {t0}, {t0}, {t1}
    s_lshl_b32 {t1}, {sS}, 8
    s_add_u32 {t0}, {t0}, {t1}
    s_and_b32 {t1}, {sW}, 1
    s_lshl_b32 {t1}, {t1}, 7
    s_add_u32 {t0}, {t0}, {t1}
    s_add_u32 {t0}, {t0}, {WS_PART}
    v_lshlrev_b32 v8, 19, {vG}
    v_lshlrev_b32 v9, 3, {vN}
    v_add3_u32 {V(aPT)}, v8, v9, {t0}
    s_lshl_b32 {t0}, {sB}, 13
    s_lshl_b32 {t1}, {sHH}, 12
    s_add_u32 {t0}, {t0}, {t1}
    s_lshl_b32 {t1}, {sS}, 7
    s_add_u32 {t0}, {t0}, {t1}
    s_add_u32 {t0}, {t0}, {WS_STAT}
    v_add_u32 {V(aSM)}, {t0}, v9
    s_lshl_b32 {t0}, {sB}, 15
    s_lshl_b32 {t1}, {sHH}, 14
    s_add_u32 {t0}, {t0}, {t1}
    s_and_b32 {t1}, {sW}, 3
    s_lshl_b32 {t1}, {t1}, 12
    s_add_u32 {t0}, {t0}, {t1}
    s_add_u32 {t0}, {t0}, {WS_QABS}
    v_lshlrev_b32 v8, 4, {vL}
    v_add_u32 {V(aGQ)}, {t0}, v8
    v_add_u32 {V(aFN)}, {WS_FLAGN}, v8
    s_lshr_b32 {t0}, {t1}, 6
    v_xor_b32 v8, {t0}, v8
    s_add_u32 {t1}, {t1}, {L_QA}
    v_add_u32 {V(aQW)}, {t1}, v8
    v_xor_b32 {V(aQW+1)}, 16, {V(aQW)}
    v_xor_b32 {V(aQW+2)}, 32, {V(aQW)}
    v_xor_b32 {V(aQW+3)}, 48, {V(aQW)}
    s_setpc_b64 s[46:47]
    """)

def setup_x(g):
    g(f"""
    s_lshl_b32 {t0}, {sH}, 8
    s_lshl_b32 {t1}, {sCQ}, 20
    s_add_u32 {t0}, {t0}, {t1}
    s_lshr_b32 {t1}, {sW}, 2
    s_lshl_b32 {t1}, {t1}, 19
    s_add_u32 {t0}, {t0}, {t1}
    s_and_b32 {t1}, {sW}, 3
    s_lshl_b32 {t1}, {t1}, 15
    s_add_u32 {t0}, {t0}, {t1}
    v_lshlrev_b32 v8, 17, {vG}
    v_lshlrev_b32 v12, 4, {vN}
    v_add3_u32 {V(aWS)}, v8, v12, {t0}
    s_mul_i32 {t0}, {sW}, {16*288}
    v_mul_u32_u24 v8, 288, {vG}
    v_add3_u32 {V(aWVw)}, v8, v12, {t0}
    v_bfe_u32 v9, {vL}, 2, 2
    v_lshl_add_u32 v9, {vG}, 3, v9
    v_mul_u32_u24 v9, 288, v9
    v_and_b32 v10, 3, {vL}
    v_lshl_add_u32 v9, v10, 3, v9
    s_lshl_b32 {t0}, {sW}, 5
    v_add_u32 {V(aWVr)}, {t0}, v9
    s_and_b32 {t1}, {sW}, 1
    s_lshl_b32 {t0}, {t1}, 14
    s_lshr_b32 {t2}, {sH}, 4
    s_lshl_b32 {t2}, {t2}, 12
    s_add_u32 {t0}, {t0}, {t2}
    s_and_b32 {t2}, {sH}, 15
    s_lshl_b32 {t2}, {t2}, 3
    s_add_u32 {t0}, {t0}, {t2}
    s_add_u32 {t0}, {t0}, {WS_STAT}
    v_lshrrev_b32 v8, 5, {vL}
    v_lshlrev_b32 v8, 13, v8
    v_and_b32 v9, 31, {vL}
    v_lshlrev_b32 v9, 7, v9
    v_add3_u32 {V(aST)}, v8, v9, {t0}
    s_lshl_b32 {t0}, {t1}, 7
    s_add_u32 {t0}, {t0}, {L_WT}
    v_lshlrev_b32 v8, 1, {vL}
    v_add_u32 {V(aWTw)}, {t0}, v8
    s_lshl_b32 {t0}, {sW}, 5
    s_add_u32 {t0}, {t0}, {L_WT}
    v_lshlrev_b32 v8, 3, {vG}
    v_add_u32 {V(aWTr)}, {t0}, v8
    s_lshl_b32 {t0}, {sH}, 17
    s_lshl_b32 {t2}, {sCQ}, 15
    s_add_u32 {t0}, {t0}, {t2}
    s_lshl_b32 {t2}, {sW}, 12
    s_add_u32 {t0}, {t0}, {t2}
    s_add_u32 {t0}, {t0}, {WS_PART}
    v_lshlrev_b32 v9, 10, {vG}
    v_add3_u32 {V(aDT)}, v9, v12, {t0}
    s_mul_i32 {t0}, {sW}, 272
    s_add_u32 {t0}, {t0}, {L_CC}
    v_add3_u32 {V(aCCw)}, v8, v12, {t0}
    v_lshrrev_b32 v9, 2, {vN}
    v_and_b32 v10, 1, {vN}
    v_lshl_add_u32 v9, v9, 1, v10
    v_mul_u32_u24 v9, 272, v9
    v_lshl_add_u32 v9, {vG}, 4, v9
    v_add_u32 {V(aCCr)}, {L_CC}, v9
    s_lshl_b32 {t0}, {sH}, 12
    s_lshl_b32 {t2}, {sCQ}, 10
    s_add_u32 {t0}, {t0}, {t2}
    s_lshl_b32 {t2}, {sW}, 7
    s_add_u32 {t0}, {t0}, {t2}
    s_add_u32 {t0}, {t0}, {WS_CTX}
    v_and_b32 v11, 7, {vN}
    v_lshlrev_b32 v9, 1, v11
    v_lshl_add_u32 v9, {vG}, 4, v9
    v_lshrrev_b32 v8, 3, {vN}
    v_lshlrev_b32 v8, 6, v8
    v_add3_u32 {V(aCT)}, v8, v9, {t0}
    v_cmp_eq_u32 vcc, 1, v10
    v_mov_b32 v8, 0x0c0c0100
    v_mov_b32 v9, 0x01000c0c
    v_cndmask_b32 {V(XS)}, v8, v9, vcc
    v_mov_b32 v8, 0x0c0c0302
    v_mov_b32 v9, 0x03020c0c
    v_cndmask_b32 {V(XS+1)}, v8, v9, vcc
    v_lshrrev_b32 v11, 1, v11
    """)
    for j in range(4):
        g(f'v_cmp_eq_u32 vcc, {j}, v11')
        g(f'v_cndmask_b32 {V(XM+j)}, 0, -1, vcc')

def gen(opt):
    o = dict(nt='', stamps=False, maxpoll=65536, sleep=0, fsleep=4, touch=1, noclr=0, early=3, mask=1, isleep=2, tuk=1, wsoff=0, prio=1, nobc=0, ctouch=1)
    o.update(opt)
    g = G(o)
    nt = o['nt']
    g(f"""
    s_cmp_ge_u32 s2, 0x100
    s_cbranch_scc1 L_exit
    s_load_dwordx16 s[4:19], s[0:1], 0
    s_load_dwordx8 s[20:27], s[0:1], 64
    s_load_dwordx2 s[28:29], s[0:1], 96
    """)
    if o['ctouch']:
        g(f"""
        s_getpc_b64 s[40:41]
        s_lshr_b32 s42, s2, 3
        s_lshl_b32 s42, s42, 10
        v_lshlrev_b32 v4, 7, v0
        v_add_u32 v4, s42, v4
        v_min_u32 v4, L_exit-{NAME}-64, v4
        v_cmp_gt_u32 vcc, 8, v0
        s_and_saveexec_b64 s[44:45], vcc
        s_cbranch_execz L_noct
        global_load_dword v24, v4, s[40:41]
        L_noct:
        s_mov_b64 exec, -1
        """)
    if o['stamps']:
        for k in range(16): g(f's_mov_b32 s{64+2*k}, 0')
    g.stamp(0)
    g(f"""
    v_lshrrev_b32 v4, 6, v0
    v_and_b32 {vL}, 63, v0
    v_readfirstlane_b32 {sW}, v4
    v_and_b32 {vN}, 15, {vL}
    v_lshrrev_b32 {vG}, 4, {vL}
    s_and_b32 {sX}, s2, 7
    s_lshr_b32 {sR}, s2, 3
    s_lshr_b32 {sB}, {sX}, 1
    s_and_b32 {sHH}, {sR}, 1
    s_and_b32 {sS}, {sX}, 1
    s_lshl_b32 {sS}, {sS}, 4
    s_lshr_b32 {t0}, {sR}, 1
    s_add_u32 {sS}, {sS}, {t0}
    s_lshr_b32 {t0}, {sR}, 3
    s_lshl_b32 {sH}, {sX}, 2
    s_add_u32 {sH}, {sH}, {t0}
    s_bfe_u32 {sCQ}, {sR}, 0x20001
    """)
    if o['prio']:
        g(f"""
        s_cmp_lt_u32 {sW}, 4
        s_cbranch_scc1 L_noprio
        s_setprio 3
        L_noprio:
        """)
    for k in (26, 27, 28, 29, aPT, aSM, aGQ, aFN, aST, aDT, aCT): g(f'v_mov_b32 v{k}, 0')
    g(f"""
    s_waitcnt lgkmcnt(0)
    {'s_add_u32 s28, s28, '+hex(o['wsoff']) if o['wsoff'] else ''}
    {'s_addc_u32 s29, s29, 0' if o['wsoff'] else ''}
    s_cmp_eq_u32 {sHH}, 1
    s_load_dword {sTAG}, {pWS}, {WS_EPOCH}
    s_cbranch_scc1 L_nonp
    """)
    WQ, AP, SEL, D1, D2, WUKF, QF, DQ = 64, 128, 160, 164, 168, 172, 188, 204
    LT = 208
    pQPw, pWK, pQPr, pQw, pQr, pQOw, pQOr, pPUB, pFP, pFD = 216, 217, 221, 222, 223, 224, 225, 226, 227, 228
    g(f"""
    s_cmp_lt_u32 {sW}, 4
    s_cbranch_scc1 L_p_issue
    s_and_b32 {t0}, {sW}, 3
    s_lshl_b32 {t0}, {t0}, 10
    v_lshlrev_b32 v9, 4, {vL}
    v_add_u32 v9, {t0}, v9
    global_load_dwordx4 v[4:7], v9, {pX}
    s_cmp_lg_u32 {sW}, 7
    s_cbranch_scc1 L_p_noclr
    s_lshl_b32 {t0}, {sH}, 10
    s_lshl_b32 {t1}, {sCQ}, 8
    s_add_u32 {t0}, {t0}, {t1}
    s_add_u32 {t0}, {t0}, {WS_QABS}
    v_lshlrev_b32 v8, 15, {vG}
    v_lshl_add_u32 v8, {vN}, 4, v8
    v_add_u32 v8, {t0}, v8
    v_mov_b32 v12, -1
    v_mov_b32 v13, -1
    v_mov_b32 v14, -1
    v_mov_b32 v15, -1
    global_store_dwordx4 v8, v[12:15], {pWS} sc1
    L_p_noclr:
    s_setprio 0
    s_call_b64 s[46:47], L_setup
    s_waitcnt lgkmcnt(0)
    """)
    tag(g)
    g(f"""
    s_waitcnt vmcnt(0)
    s_cmp_lg_u32 {sW}, 7
    s_cbranch_scc1 L_p_ln
    s_lshl_b32 {t0}, {sX}, 7
    s_lshl_b32 {t1}, {sR}, 2
    s_add_u32 {t0}, {t0}, {t1}
    s_add_u32 {t0}, {t0}, {WS_FLAGP}
    v_mov_b32 v8, {t0}
    v_mov_b32 v10, {sTAG}
    v_mov_b32 v11, {sTAG}
    s_mov_b64 exec, 1
    global_store_dwordx2 v8, v[10:11], {pWS} sc1
    s_mov_b64 exec, -1
    L_p_ln:
    """)
    for k in range(4):
        g(f'v_lshlrev_b32 v{8+2*k}, 16, v{4+k}')
        g(f'v_and_b32 v{9+2*k}, 0xffff0000, v{4+k}')
    g("""
    v_add_f32 v16, v8, v9
    v_add_f32 v17, v10, v11
    v_add_f32 v18, v12, v13
    v_add_f32 v19, v14, v15
    v_add_f32 v16, v16, v17
    v_add_f32 v18, v18, v19
    v_add_f32 v16, v16, v18
    """)
    allreduce(g, 'v_add_f32', ['v16'], ['v17'])
    g(f'v_mul_f32 v16, {hex(f2i(1/512))}, v16')
    for k in range(8): g(f'v_sub_f32 v{LT+k}, v{8+k}, v16')
    g(f'v_mul_f32 v18, v{LT}, v{LT}')
    for k in range(1, 8): g(f'v_fmac_f32 v18, v{LT+k}, v{LT+k}')
    allreduce(g, 'v_add_f32', ['v18'], ['v17'])
    g(f'v_mul_f32 v18, {hex(f2i(1/512))}, v18')
    rne(g, 'v16'); rne(g, 'v18')
    g(f'v_add_f32 v18, {hex(f2i(1e-5))}, v18')
    rne(g, 'v18')
    g('v_sqrt_f32 v18, v18')
    rne(g, 'v18')
    g('v_rcp_f32 v18, v18')
    for k in range(8): g(f'v_sub_f32 v{8+k}, v{8+k}, v16')
    for k in range(4): g(f'v_cvt_pk_bf16_f32 v{4+k}, v{8+2*k}, v{9+2*k}')
    for k in range(4):
        g(f'v_lshlrev_b32 v{8+2*k}, 16, v{4+k}')
        g(f'v_and_b32 v{9+2*k}, 0xffff0000, v{4+k}')
    for k in range(8): g(f'v_mul_f32 v{8+k}, v{8+k}, v18')
    for k in range(4): g(f'v_cvt_pk_bf16_f32 v{4+k}, v{8+2*k}, v{9+2*k}')
    g(f"""
    s_and_b32 {t0}, {sW}, 3
    s_lshl_b32 {t0}, {t0}, 10
    s_add_u32 {t0}, {t0}, {L_XN}
    v_lshlrev_b32 v9, 4, {vL}
    v_add_u32 v9, {t0}, v9
    ds_write_b128 v9, v[4:7]
    s_waitcnt lgkmcnt(0)
    s_barrier
    L_p_issue:
    s_lshr_b32 {t3}, {sCQ}, 1
    s_lshl_b32 {t3}, {t3}, 2
    s_xor_b32 {t3}, {t3}, {sW}
    s_lshl_b32 {t0}, {t3}, 19
    s_and_b32 {t1}, {sCQ}, 1
    s_lshl_b32 {t1}, {t1}, 18
    s_or_b32 {t0}, {t0}, {t1}
    s_lshl_b32 {t1}, {sH}, 8
    s_or_b32 {t0}, {t0}, {t1}
    v_lshlrev_b32 v10, 14, {vG}
    v_lshl_add_u32 v10, {vN}, 4, v10
    v_add_u32 v10, {t0}, v10
    """)
    for i in range(8):
        for p in range(2):
            g(f'v_xor_b32 v11, {hex((i << 16) | (p << 13))}, v10')
            g(f'global_load_dwordx4 {V(WQ+8*i+4*p,4)}, v11, {pWQ} {nt}')
    g(f"""
    s_lshl_b32 {t0}, {sCQ}, 20
    s_lshl_b32 {t1}, {sW}, 17
    s_or_b32 {t0}, {t0}, {t1}
    s_lshl_b32 {t1}, {sH}, 8
    s_or_b32 {t0}, {t0}, {t1}
    v_xor_b32 v12, {vN}, {vG}
    v_lshlrev_b32 v12, 4, v12
    v_lshl_add_u32 v10, {vG}, 13, v12
    v_add_u32 v10, {t0}, v10
    s_lshl_b32 {t2}, {sW}, 14
    """)
    for u in range(4):
        g(f's_add_u32 m0, {t2}, {u*1024}')
        g(f'v_xor_b32 v11, {hex((u << 15) | (u << 6))}, v10')
        g(f'global_load_lds_dwordx4 v11, {pWUK} {nt}')
    g.stamp(1)
    g(f"""
    v_lshl_add_u32 v12, {vN}, 8, v12
    v_add_u32 {V(pWK)}, {t2}, v12
    v_xor_b32 {V(pWK+1)}, 64, {V(pWK)}
    v_xor_b32 {V(pWK+2)}, 128, {V(pWK)}
    v_xor_b32 {V(pWK+3)}, 192, {V(pWK)}
    v_and_b32 v8, 1, {vN}
    v_cmp_eq_u32 vcc, 1, v8
    v_mov_b32 v10, 0x0c0c0100
    v_mov_b32 v11, 0x01000c0c
    v_mov_b32 v12, 0x0c0c0302
    v_mov_b32 v13, 0x03020c0c
    v_cndmask_b32 v10, v10, v11, vcc
    v_cndmask_b32 v12, v12, v13, vcc
    v_and_b32 v8, 2, {vN}
    v_cmp_eq_u32 vcc, 0, v8
    v_mov_b32 v11, 0x0c0c0c0c
    v_cndmask_b32 {V(SEL)}, v11, v10, vcc
    v_cndmask_b32 {V(SEL+1)}, v10, v11, vcc
    v_cndmask_b32 {V(SEL+2)}, v11, v12, vcc
    v_cndmask_b32 {V(SEL+3)}, v12, v11, vcc
    s_lshl_b32 {t0}, {t3}, 7
    s_and_b32 {t1}, {sCQ}, 1
    s_lshl_b32 {t1}, {t1}, 6
    s_add_u32 {t0}, {t0}, {t1}
    s_add_u32 {t0}, {t0}, {L_XN}
    v_lshrrev_b32 v8, 2, {vN}
    v_lshlrev_b32 v8, 10, v8
    v_lshl_add_u32 v8, {vG}, 2, v8
    v_add_u32 v8, {t0}, v8
    s_cmp_ge_u32 {sW}, 4
    s_cbranch_scc1 L_p_ap
    s_waitcnt lgkmcnt(0)
    """)
    tag(g)
    g("""
    s_barrier
    L_p_ap:
    """)
    for i in range(8):
        g(f'v_xor_b32 v9, {i*16}, v8')
        g(f'ds_read_b32 v{12+i}, v9')
    g(f"""
    s_lshl_b32 {t0}, {sW}, 11
    s_add_u32 {t0}, {t0}, {L_QA}
    v_lshlrev_b32 v8, 4, {vL}
    v_add_u32 {V(pQPw)}, {t0}, v8
    v_lshlrev_b32 v8, 2, v0
    v_add_u32 {V(pQPr)}, {L_QA}, v8
    v_bfe_u32 v8, v0, 6, 2
    v_mul_u32_u24 v8, 320, v8
    v_bfe_u32 v9, v0, 2, 4
    v_lshl_add_u32 v8, v9, 4, v8
    v_lshrrev_b32 v9, 8, v0
    v_lshl_add_u32 v8, v9, 3, v8
    v_and_b32 v9, 3, v0
    v_lshl_add_u32 v8, v9, 1, v8
    v_add_u32 {V(pQw)}, {L_Q}, v8
    v_and_b32 v9, 3, {vN}
    v_mul_u32_u24 v8, 320, v9
    v_lshl_add_u32 v8, {vG}, 4, v8
    v_add_u32 {V(pQr)}, {L_Q}, v8
    v_mul_u32_u24 v8, 288, v9
    v_lshl_add_u32 v8, {vG}, 3, v8
    s_lshl_b32 {t0}, {sW}, 5
    s_add_u32 {t0}, {t0}, {L_CC}
    v_add_u32 {V(pQOw)}, {t0}, v8
    s_mul_i32 {t0}, {sW}, 288
    s_add_u32 {t0}, {t0}, {L_CC}
    v_lshlrev_b32 v8, 4, {vN}
    v_add_u32 {V(pQOr)}, {t0}, v8
    s_lshl_b32 {t0}, {sW}, 15
    s_lshl_b32 {t1}, {sH}, 10
    s_add_u32 {t0}, {t0}, {t1}
    s_lshl_b32 {t1}, {sCQ}, 8
    s_add_u32 {t0}, {t0}, {t1}
    s_add_u32 {t0}, {t0}, {WS_QABS}
    v_add_u32 {V(pPUB)}, {t0}, v8
    v_lshlrev_b32 v8, 3, {vL}
    v_add_u32 {V(pFP)}, {WS_FLAGP}, v8
    """)
    ckv_addr(g)
    for i in range(8):
        g(f's_waitcnt lgkmcnt({7-i})')
        for k in range(4):
            g(f'v_perm_b32 {V(AP+4*i+k)}, v{12+i}, v{12+i}, {V(SEL+k)}')
    g.stamp(2)
    for i in range(8):
        R = WQ + 8*i
        g(f"""
        s_waitcnt vmcnt({4 + 2*(7-i)})
        v_swap_b32 {V(R+2)}, {V(R+4)}
        v_swap_b32 {V(R+3)}, {V(R+5)}
        {MFMA} {V(D1,4)}, {V(AP+4*i,4)}, {V(R,4)}, {V(D1,4) if i else 0}
        {MFMA} {V(D2,4)}, {V(AP+4*i,4)}, {V(R+4,4)}, {V(D2,4) if i else 0}
        """)
    g.stamp(3)
    E = o['early']
    g(f"""
    ds_write_b128 {V(pQPw)}, {V(D1,4)}
    ds_write_b128 {V(pQPw)}, {V(D2,4)} offset:1024
    s_cmp_ge_u32 {sW}, 4
    s_cbranch_scc1 L_p_c1
    s_call_b64 s[46:47], L_setup
    """)
    ckv_dma(g, range(7, 7-E, -1), True)
    g(f"""
    s_waitcnt vmcnt({4*E})
    s_branch L_p_c2
    L_p_c1:
    s_waitcnt vmcnt(0)
    global_load_dwordx2 {V(pFD,2)}, {V(pFP)}, {pWS} sc1
    L_p_c2:
    """)
    for t in range(4): g(f'ds_read_b128 {V(WUKF+4*t,4)}, {V(pWK+t)}')
    g("""
    s_waitcnt lgkmcnt(0)
    s_barrier
    """)
    for k in range(4): g(f'ds_read2st64_b32 {V(12+2*k,2)}, {V(pQPr)} offset0:{16*k} offset1:{16*k+8}')
    g(f"""
    s_mov_b32 s44, 0x000f000f
    s_mov_b32 s45, 0x000f000f
    s_waitcnt lgkmcnt(2)
    v_add_f32 v12, v12, v13
    v_add_f32 v14, v14, v15
    s_waitcnt lgkmcnt(0)
    v_add_f32 v16, v16, v17
    v_add_f32 v18, v18, v19
    v_add_f32 v12, v12, v14
    v_add_f32 v16, v16, v18
    v_add_f32 v12, v12, v16
    v_cvt_pk_bf16_f32 v12, v12, v12
    ds_write_b16 {V(pQw)}, v12
    s_waitcnt lgkmcnt(0)
    s_barrier
    """)
    for t in range(4): g(f'ds_read_b128 {V(QF+4*t,4)}, {V(pQr)} offset:{64*t}')
    for t in range(4):
        g(f's_waitcnt lgkmcnt({3-t})')
        g(f'{MFMA} {V(DQ,4)}, {V(WUKF+4*t,4)}, {V(QF+4*t,4)}, {V(DQ,4) if t else 0}')
    g(f"""
    v_cvt_pk_bf16_f32 v12, {V(DQ)}, {V(DQ+1)}
    v_cvt_pk_bf16_f32 v13, {V(DQ+2)}, {V(DQ+3)}
    s_mov_b64 exec, {sM}
    ds_write_b64 {V(pQOw)}, v[12:13]
    s_mov_b64 exec, -1
    s_waitcnt lgkmcnt(0)
    s_barrier
    s_cmp_ge_u32 {sW}, 4
    s_cbranch_scc1 L_p_fp
    s_mov_b64 exec, 0xffff
    ds_read_b128 v[12:15], {V(pQOr)}
    s_waitcnt lgkmcnt(0)
    global_store_dwordx4 {V(pPUB)}, v[12:15], {pWS} sc1
    s_mov_b64 exec, -1
    """)
    g.stamp(4)
    ckv_dma(g, range(7-E, -1, -1), True)
    g.stamp(5)
    g(f"""
    s_branch L_ldw
    L_p_fp:
    s_mov_b32 {sCNT}, 0
    s_waitcnt vmcnt(0)
    L_pfp:
    v_cmp_ne_u32 vcc, {sTAG}, {V(pFD)}
    s_cbranch_vccz L_b0b
    s_add_u32 {sCNT}, {sCNT}, 1
    s_cmp_ge_u32 {sCNT}, {o['maxpoll']}
    s_cbranch_scc1 L_b0b
    s_sleep {o['fsleep']}
    global_load_dwordx2 {V(pFD,2)}, {V(pFP)}, {pWS} sc1
    s_waitcnt vmcnt(0)
    s_branch L_pfp
    """)
    setup_att(g)
    g(f"""
    L_nonp:
    s_cmp_lg_u32 {sW}, 7
    s_cbranch_scc1 L_n_su
    """)
    if o['tuk']:
        g(f"""
        s_lshl_b32 {t0}, {sCQ}, 20
        s_lshl_b32 {t1}, {sH}, 8
        s_add_u32 {t0}, {t0}, {t1}
        v_lshrrev_b32 v8, 1, {vL}
        v_lshlrev_b32 v8, 13, v8
        v_and_b32 v9, 1, {vL}
        v_lshl_add_u32 v8, v9, 7, v8
        v_add_u32 v8, {t0}, v8
        """)
        for k in range(4):
            if k: g('v_add_u32 v8, 0x40000, v8')
            g(f'global_load_dword v{16+k}, v8, {pWUK} {nt}')
    g(f"""
    s_lshl_b32 {t3}, {sX}, 4
    s_lshr_b32 {t1}, {sR}, 1
    s_add_u32 {t3}, {t3}, {t1}
    s_mul_i32 {t1}, {t3}, {CLR_PER}
    s_add_u32 {t1}, {t1}, {WS_CLR}
    v_lshlrev_b32 v8, 4, {vL}
    v_add_u32 v8, {t1}, v8
    v_mov_b32 v12, -1
    v_mov_b32 v13, -1
    v_mov_b32 v14, -1
    v_mov_b32 v15, -1
    """)
    for i in range(0 if o['noclr'] else CLR_PER // 1024):
        if i and i % 4 == 0: g('v_add_u32 v8, 0x1000, v8')
        g(f'global_store_dwordx4 v8, v[12:15], {pWS} offset:{(i % 4)*1024} sc1')
    g(f"""
    {'' if o['nobc'] else 's_barrier'}
    s_call_b64 s[46:47], L_setup
    s_branch L_n_x
    L_n_su:
    s_call_b64 s[46:47], L_setup
    """)
    ckv_addr(g)
    g(f"""
    {'' if o['nobc'] else 's_barrier'}
    s_cmp_ge_u32 {sW}, 4
    s_cbranch_scc1 L_n_x
    """)
    g.stamp(1)
    ckv_dma(g, range(8), False)
    g.stamp(5)
    g('L_n_x:')
    setup_x(g)
    g('s_waitcnt lgkmcnt(0)')
    tag(g)
    g(f"""
    s_cmp_lg_u32 {sW}, 7
    s_cbranch_scc1 L_n_done
    s_lshl_b32 {t3}, {t3}, 3
    s_add_u32 {t3}, {t3}, {WS_FLAGN}
    v_mov_b32 v9, {t3}
    v_mov_b32 v10, {sTAG}
    v_mov_b32 v11, {sTAG}
    v_lshlrev_b32 v8, 3, {vL}
    v_add_u32 v8, {WS_FLAGP + 512}, v8
    s_mov_b64 exec, 1
    s_waitcnt vmcnt(0)
    global_store_dwordx2 v9, v[10:11], {pWS} sc1
    s_mov_b64 exec, -1
    """)
    g.stamp(1)
    lab = poll_begin(g, 'pf')
    g(f"""
    global_load_dwordx2 v[14:15], v8, {pWS} sc1
    s_waitcnt vmcnt(0)
    v_cmp_ne_u32 vcc, {sTAG}, v14
    """)
    poll_end(g, lab, o['fsleep'])
    g.stamp(5)
    g(f"""
    L_n_done:
    s_cmp_ge_u32 {sW}, 4
    s_cbranch_scc1 L_b0b
    L_ldw:
    s_waitcnt vmcnt(0)
    L_b0b:
    s_barrier
    """)
    g.stamp(6)
    g(f"""
    s_cmp_lt_u32 {sW}, 4
    s_cbranch_scc1 L_sfr
    """)
    for j in range(4): g(f'global_load_dwordx4 {V(GQ+4*j,4)}, {V(aGQ)}, {pWS} offset:{j*1024} sc1')
    g('L_sfr:')
    for t in range(16): g(f'ds_read_b128 {V(SFR+4*t,4)}, {V(AS+(t&3))} offset:{256*(t>>2)}')
    g(f"""
    s_cmp_lt_u32 {sW}, 4
    s_cbranch_scc1 L_b0a
    s_mov_b32 {sCNT}, 0
    L_pq:
    s_waitcnt vmcnt(0)
    """)
    check_sent(g, 'v14', [V(GQ+k) for k in range(16)])
    g(f"""
    s_cbranch_vccz L_pq_ok
    s_add_u32 {sCNT}, {sCNT}, 1
    s_cmp_ge_u32 {sCNT}, {o['maxpoll']}
    s_cbranch_scc1 L_pq_ok
    {'s_mov_b64 exec, vcc' if o['mask'] else ''}
    {'s_sleep '+str(o['sleep']) if o['sleep'] else ''}
    """)
    for j in range(4): g(f'global_load_dwordx4 {V(GQ+4*j,4)}, {V(aGQ)}, {pWS} offset:{j*1024} sc1')
    g("""
    s_branch L_pq
    L_pq_ok:
    s_mov_b64 exec, -1
    """)
    for j in range(4): g(f'ds_write_b128 {V(aQW+j)}, {V(GQ+4*j,4)} offset:{j*1024}')
    g(f"""
    global_load_dwordx4 v[16:19], {V(aFN)}, {pWS} sc1
    s_waitcnt lgkmcnt(0)
    L_b0a:
    s_barrier
    """)
    g.stamp(7)
    for t in range(15): g(f'ds_read_b128 {V(QFR+4*t,4)}, {V(AQ+(t&3))} offset:{256*(t>>2)}')
    g(f"""
    s_cmp_eq_u32 {sHH}, 0
    s_cbranch_scc1 L_nostg
    """)
    for j in range(4):
        g(f'v_xor_b32 v9, {j << 13}, {V(aWS)}')
        g(f'global_load_dwordx4 {V(ST+4*j,4)}, v9, {pWUV} {nt}')
    g('L_nostg:')
    if o['touch']:
        g(f"""
        s_cmp_ge_u32 {sW}, 4
        s_cbranch_scc1 L_notch
        s_cmp_ge_u32 {sW}, 2
        s_cbranch_scc1 L_tch2
        s_lshl_b32 {t0}, {sR}, 17
        s_lshl_b32 {t1}, {sW}, 16
        s_add_u32 {t0}, {t0}, {t1}
        s_lshl_b32 {t1}, {sX}, 7
        s_add_u32 {t0}, {t0}, {t1}
        v_lshlrev_b32 v8, 10, {vL}
        v_add_u32 v9, {t0}, v8
        global_load_dword v20, v9, {pWO} {nt}
        s_mul_i32 {t0}, {sR}, {56*1024}
        s_add_u32 {t0}, {t0}, {t1}
        s_mul_i32 {t1}, {sW}, {28*1024}
        s_add_u32 {t0}, {t0}, {t1}
        v_min_u32 v8, {27*1024}, v8
        v_add_u32 v9, {t0}, v8
        global_load_dword v21, v9, {pWD} {nt}
        s_branch L_notch
        L_tch2:
        s_mul_i32 {t0}, {sR}, {16*3584}
        s_and_b32 {t1}, {sW}, 1
        s_mul_i32 {t1}, {t1}, {8*3584}
        s_add_u32 {t0}, {t0}, {t1}
        s_mul_i32 {t1}, {sX}, 448
        s_and_b32 {t1}, {t1}, 0xffffff80
        s_add_u32 {t0}, {t0}, {t1}
        v_bfe_u32 v8, {vL}, 2, 3
        v_mul_u32_u24 v8, 3584, v8
        v_and_b32 v9, 3, {vL}
        v_lshlrev_b32 v9, 7, v9
        v_add3_u32 v9, v8, v9, {t0}
        s_mov_b64 exec, 0xffffffff
        global_load_dword v20, v9, {pWG} {nt}
        global_load_dword v21, v9, {pWU} {nt}
        s_mov_b64 exec, -1
        L_notch:
        """)
    for t in range(16):
        g(f's_waitcnt lgkmcnt({14 if t == 0 else 15-t})')
        g(f'{MFMA} {V(SA,4)}, {V(SFR+4*t,4)}, {V(QFR+4*t,4)}, {V(SA,4) if t else 0}')
        if t == 0: g(f'ds_read_b128 {V(QFR+60,4)}, {V(AQ+3)} offset:768')
    g(f"""
    s_mov_b32 {t2}, {hex(f2i(SCALE))}
    v_max_f32 v8, {V(SA)}, {V(SA+1)}
    v_max3_f32 v8, v8, {V(SA+2)}, {V(SA+3)}
    v_mov_b32 v9, v8
    v_permlane16_swap_b32 v9, v8
    v_max_f32 v8, v8, v9
    v_mov_b32 v9, v8
    v_permlane32_swap_b32 v9, v8
    v_max_f32 v8, v8, v9
    ds_write_b32 {V(aMXw)}, v8
    s_waitcnt lgkmcnt(0)
    s_barrier
    """)
    g.stamp(8)
    def trd(ks, tau, a):
        return f'ds_read_b64_tr_b16 {V(QFR + (ks*4+tau)*4 + 2*a, 2)}, {V(AV + 8*(ks>>1) + 2*tau + a)} offset:{a*1024 + (ks&1)*32768}'
    trs = [(ks, tau, a) for ks in range(4) for tau in range(4) for a in range(2)]
    g(f"""
    ds_read_b128 {V(OA,4)}, {V(aMXr)}
    ds_read_b128 {V(OA+4,4)}, {V(aMXr)} offset:16
    """)
    for x in trs[:12]: g(trd(*x))
    g(f"""
    s_waitcnt lgkmcnt(12)
    v_max3_f32 v8, {V(OA)}, {V(OA+1)}, {V(OA+2)}
    v_max3_f32 v9, {V(OA+3)}, {V(OA+4)}, {V(OA+5)}
    v_max3_f32 v8, v8, {V(OA+6)}, {V(OA+7)}
    v_max_f32 v8, v8, v9
    v_mul_f32 v8, {t2}, v8
    v_fma_f32 v12, {V(SA)}, {t2}, -v8
    v_fma_f32 v13, {V(SA+1)}, {t2}, -v8
    v_fma_f32 v14, {V(SA+2)}, {t2}, -v8
    v_fma_f32 v15, {V(SA+3)}, {t2}, -v8
    v_exp_f32 v12, v12
    v_exp_f32 v13, v13
    v_exp_f32 v14, v14
    v_exp_f32 v15, v15
    v_cvt_pk_bf16_f32 v12, v12, v13
    v_cvt_pk_bf16_f32 v13, v14, v15
    ds_write_b64 {V(aPLw)}, v[12:13]
    s_cmp_lt_u32 {sW}, 4
    s_cbranch_scc1 L_b2
    s_mov_b32 {sCNT}, 0
    s_cmp_eq_u32 {sHH}, 0
    s_cbranch_scc1 L_fn0
    s_waitcnt vmcnt(4)
    s_branch L_fn
    L_fn0:
    s_waitcnt vmcnt(0)
    L_fn:
    v_cmp_ne_u32 vcc, {sTAG}, v16
    v_cmp_ne_u32 {sM}, {sTAG}, v18
    s_or_b64 vcc, vcc, {sM}
    s_cbranch_vccz L_b2
    s_add_u32 {sCNT}, {sCNT}, 1
    s_cmp_ge_u32 {sCNT}, {o['maxpoll']}
    s_cbranch_scc1 L_b2
    global_load_dwordx4 v[16:19], {V(aFN)}, {pWS} sc1
    s_branch L_fn0
    L_b2:
    s_waitcnt lgkmcnt(0)
    s_barrier
    """)
    g.stamp(9)
    seq = [('p', k) for k in range(4)] + [('t', x) for x in trs[12:]]
    issued = 0
    def issue(upto):
        nonlocal issued
        while issued < min(upto, len(seq)):
            kind, x = seq[issued]
            g(f'ds_read_b128 {V(PF+4*x,4)}, {V(aPLr)} offset:{64*x}' if kind == 'p' else trd(*x))
            issued += 1
    issue(14)
    g(f"""
    s_cmp_lg_u32 {sW}, 7
    s_cbranch_scc1 L_nol
    v_mov_b32 v12, 0x3f803f80
    v_mov_b32 v13, 0x3f803f80
    v_mov_b32 v14, 0x3f803f80
    v_mov_b32 v15, 0x3f803f80
    s_waitcnt lgkmcnt(10)
    """)
    for ks in range(4): g(f'{MFMA} {V(LA,4)}, v[12:15], {V(PF+4*ks,4)}, {V(LA,4) if ks else 0}')
    g('L_nol:')
    lastwait = None
    for ks in range(4):
        for tau in range(4):
            need = seq.index(('p', ks))
            if (ks, tau, 1) in trs[12:]: need = max(need, seq.index(('t', (ks, tau, 1))))
            cnt = issued - 1 - need
            if lastwait is None or need > lastwait:
                g(f's_waitcnt lgkmcnt({cnt})'); lastwait = need
            g(f'{MFMA} {V(OA+4*tau,4)}, {V(PF+4*ks,4)}, {V(QFR+(ks*4+tau)*4,4)}, {V(OA+4*tau,4) if ks else 0}')
            issue(min(len(seq), lastwait + 1 + 14))
        if ks == 0:
            g(f"""
            s_cmp_lg_u32 {sW}, 7
            s_cbranch_scc1 L_nosm
            v_mov_b32 v9, {V(LA)}
            s_mov_b64 exec, 0xffff
            global_store_dwordx2 {V(aSM)}, v[8:9], {pWS} sc1
            s_mov_b64 exec, -1
            L_nosm:
            """)
    for i in range(4):
        g(f'v_cvt_pk_bf16_f32 v{12+2*i}, {V(OA+i)}, {V(OA+4+i)}')
        g(f'v_cvt_pk_bf16_f32 v{13+2*i}, {V(OA+8+i)}, {V(OA+12+i)}')
        if i: g(f'v_add_u32 {V(aPT)}, 0x20000, {V(aPT)}')
        g(f'global_store_dwordx2 {V(aPT)}, {V(12+2*i,2)}, {pWS} sc1')
    g.stamp(10)
    g(f"""
    s_lshr_b32 {t3}, {sR}, 1
    s_barrier
    s_cmp_eq_u32 {sHH}, 1
    s_cbranch_scc1 L_x
    s_cmp_lt_u32 {t3}, 8
    s_cbranch_scc1 L_y
    s_sub_u32 {t3}, {t3}, 8
    s_cmp_lt_u32 {t3}, 4
    s_cbranch_scc1 L_f2
    s_sub_u32 {t3}, {t3}, 4
    s_branch L_f1
    """)
    WF, XD, A0, XA, CF = 64, 80, 96, 112, 116
    g("""
    L_x:
    s_waitcnt vmcnt(4)
    """)
    for j in range(4): g(f'ds_write_b128 {V(aWVw)}, {V(ST+4*j,4)} offset:{L_WV + j*1152}')
    g(f"""
    s_waitcnt lgkmcnt(0)
    s_barrier
    """)
    for t in range(4):
        for a in range(2):
            g(f'ds_read_b64_tr_b16 {V(WF+4*t+2*a,2)}, {V(aWVr)} offset:{L_WV + t*9216 + a*1152}')
    g(f"""
    s_cmp_ge_u32 {sW}, 2
    s_cbranch_scc1 L_bw
    """)
    lab = poll_begin(g, 'pm')
    g(f"""
    global_load_dwordx2 v[12:13], {V(aST)}, {pWS} sc1
    s_waitcnt vmcnt(0)
    """)
    check_sent(g, 'v14', ['v12', 'v13'])
    poll_end(g, lab)
    g('v_mov_b32 v14, v12')
    allreduce(g, 'v_max_f32', ['v14'], None, full=False)
    g(f"""
    v_mov_b32 v15, v14
    v_permlane16_swap_b32 v15, v14
    v_max_f32 v14, v14, v15
    v_sub_f32 v12, v12, v14
    v_exp_f32 v12, v12
    v_mul_f32 v13, v12, v13
    """)
    allreduce(g, 'v_add_f32', ['v13'], None, full=False)
    g(f"""
    v_mov_b32 v15, v13
    v_permlane16_swap_b32 v15, v13
    v_add_f32 v13, v13, v15
    v_rcp_f32 v13, v13
    v_mul_f32 v12, v12, v13
    v_cvt_pk_bf16_f32 v12, v12, v12
    ds_write_b16 {V(aWTw)}, v12
    L_bw:
    s_waitcnt lgkmcnt(0)
    s_barrier
    """)
    g.stamp(11)
    for u in range(4): g(f'global_load_dwordx4 {V(XD+4*u,4)}, {V(aDT)}, {pWS} offset:{u*256} sc1')
    g(f"""
    ds_read_b64 v[12:13], {V(aWTr)}
    s_mov_b32 {sCNT}, 0
    s_mov_b32 s44, -1
    s_mov_b32 s45, 0
    s_waitcnt lgkmcnt(0)
    """)
    for u in range(4):
        g(f'v_perm_b32 v14, v{12+(u>>1)}, v{12+(u>>1)}, {V(XS+(u&1))}')
        for j in range(4): g(f'v_and_b32 {V(A0+4*u+j)}, {V(XM+j)}, v14')
    g("""
    L_px:
    s_waitcnt vmcnt(0)
    """)
    check_sent(g, 'v14', [V(XD+k) for k in range(16)])
    g(f"""
    s_cbranch_vccz L_px_ok
    s_add_u32 {sCNT}, {sCNT}, 1
    s_cmp_ge_u32 {sCNT}, {o['maxpoll']}
    s_cbranch_scc1 L_px_ok
    {'s_mov_b64 exec, vcc' if o['mask'] else ''}
    {'s_sleep '+str(o['sleep']) if o['sleep'] else ''}
    """)
    for u in range(4): g(f'global_load_dwordx4 {V(XD+4*u,4)}, {V(aDT)}, {pWS} offset:{u*256} sc1')
    g("""
    s_branch L_px
    L_px_ok:
    s_mov_b64 exec, -1
    """)
    g.stamp(12)
    for u in range(4): g(f'{MFMA} {V(XA,4)}, {V(A0+4*u,4)}, {V(XD+4*u,4)}, {V(XA,4) if u else 0}')
    g(f"""
    v_cvt_pk_bf16_f32 v12, {V(XA)}, {V(XA+1)}
    v_cvt_pk_bf16_f32 v13, {V(XA+2)}, {V(XA+3)}
    s_mov_b64 exec, {sM}
    ds_write_b64 {V(aCCw)}, v[12:13]
    s_mov_b64 exec, -1
    s_waitcnt lgkmcnt(0)
    s_barrier
    """)
    for t in range(4): g(f'ds_read_b128 {V(CF+4*t,4)}, {V(aCCr)} offset:{64*t}')
    g("""
    s_mov_b32 s44, 0x55555555
    s_mov_b32 s45, 0x55555555
    """)
    for t in range(4):
        g(f's_waitcnt lgkmcnt({3-t})')
        g(f'{MFMA} {V(XA,4)}, {V(CF+4*t,4)}, {V(WF+4*t,4)}, {V(XA,4) if t else 0}')
    g(f"""
    v_add_f32 v12, {V(XA)}, {V(XA+1)}
    v_mov_b32_dpp v13, v12 quad_perm:[1,0,3,2] row_mask:0xf bank_mask:0xf
    v_cvt_pk_bf16_f32 v12, v12, v13
    s_mov_b64 exec, {sM}
    global_store_dword {V(aCT)}, v12, {pWS} sc1
    s_mov_b64 exec, -1
    """)
    g.stamp(13)
    g(f"""
    s_cmp_ge_u32 {t3}, 10
    s_cbranch_scc1 L_end
    s_add_u32 {t3}, {t3}, 4
    s_branch L_f1
    """)
    BF, YD, YA = 64, 96, 104
    g(f"""
    L_y:
    s_lshl_b32 {t0}, {t3}, 19
    s_lshl_b32 {t1}, {sW}, 16
    s_add_u32 {t0}, {t0}, {t1}
    s_lshl_b32 {t1}, {sX}, 7
    s_add_u32 {t0}, {t0}, {t1}
    v_lshrrev_b32 v8, 3, {vL}
    v_and_b32 v9, 2, v8
    v_and_b32 v10, 7, {vL}
    v_xor_b32 v9, v9, v10
    v_lshlrev_b32 v9, 4, v9
    v_lshl_add_u32 v8, v8, 10, v9
    v_add_u32 v8, {t0}, v8
    s_lshl_b32 {t2}, {sW}, 13
    s_add_u32 {t2}, {t2}, {L_ROLE}
    """)
    for i in range(8):
        g(f's_add_u32 m0, {t2}, {i*1024}')
        g(f'v_xor_b32 v9, {hex((i << 13) | ((i & 1) << 6))}, v8')
        g(f'global_load_lds_dwordx4 v9, {pWO} {nt}')
    g(f"""
    v_bfe_u32 v8, {vL}, 2, 2
    v_and_b32 v9, 2, v8
    v_and_b32 v10, 1, {vG}
    v_lshl_add_u32 v9, v10, 2, v9
    v_bfe_u32 v10, {vL}, 1, 1
    v_xor_b32 v9, v9, v10
    v_lshlrev_b32 v9, 4, v9
    v_lshl_add_u32 v8, {vG}, 3, v8
    v_lshl_add_u32 v9, v8, 7, v9
    v_and_b32 v10, 1, {vL}
    v_lshl_add_u32 v9, v10, 3, v9
    v_add_u32 v12, {t2}, v9
    v_xor_b32 v13, 32, v12
    v_xor_b32 v14, 64, v12
    v_xor_b32 v15, 96, v12
    s_lshl_b32 {t0}, {t3}, 14
    s_lshr_b32 {t1}, {sW}, 1
    s_lshl_b32 {t1}, {t1}, 12
    s_add_u32 {t0}, {t0}, {t1}
    s_and_b32 {t1}, {sW}, 1
    s_lshl_b32 {t1}, {t1}, 9
    s_add_u32 {t0}, {t0}, {t1}
    s_add_u32 {t0}, {t0}, {WS_CTX}
    v_lshrrev_b32 v8, 2, {vN}
    v_lshlrev_b32 v8, 10, v8
    v_lshl_add_u32 v8, {vG}, 6, v8
    v_and_b32 v9, 3, {vN}
    v_lshl_add_u32 v8, v9, 4, v8
    v_add_u32 v26, {t0}, v8
    s_lshl_b32 {t0}, {sW}, 10
    s_add_u32 {t0}, {t0}, {L_RED}
    v_lshlrev_b32 v8, 4, {vL}
    v_add_u32 v27, {t0}, v8
    s_lshl_b32 {t0}, {sW}, 2
    s_add_u32 {t0}, {t0}, {L_RED}
    v_add_u32 v28, {t0}, v8
    s_lshl_b32 {t0}, {sX}, 12
    s_lshl_b32 {t1}, {t3}, 9
    s_add_u32 {t0}, {t0}, {t1}
    s_lshl_b32 {t1}, {sW}, 7
    s_add_u32 {t0}, {t0}, {t1}
    s_add_u32 {t0}, {t0}, {WS_HPART}
    v_lshlrev_b32 v8, 1, {vL}
    v_add_u32 v29, {t0}, v8
    s_waitcnt vmcnt(0)
    """)
    for T in range(2):
        for tau in range(4):
            for a in range(2):
                g(f'ds_read_b64_tr_b16 {V(BF+(T*4+tau)*4+2*a,2)}, v{12+tau} offset:{T*4096 + a*512}')
    g.stamp(13)
    lab = poll_begin(g, 'py')
    g(f"""
    global_load_dwordx4 {V(YD,4)}, v26, {pWS} sc1
    global_load_dwordx4 {V(YD+4,4)}, v26, {pWS} offset:256 sc1
    s_waitcnt vmcnt(0)
    """)
    check_sent(g, 'v8', [V(YD+k) for k in range(8)])
    poll_end(g, lab)
    g.stamp(14)
    g('s_waitcnt lgkmcnt(0)')
    for T in range(2):
        for tau in range(4):
            g(f'{MFMA} {V(YA+4*tau,4)}, {V(YD+4*T,4)}, {V(BF+(T*4+tau)*4,4)}, {V(YA+4*tau,4) if T else 0}')
    for i in range(4): g(f'v_permlane16_swap_b32 {V(YA+i)}, {V(YA+4+i)}')
    for i in range(4): g(f'v_permlane16_swap_b32 {V(YA+8+i)}, {V(YA+12+i)}')
    for i in range(4): g(f'v_add_f32 {V(YA+i)}, {V(YA+i)}, {V(YA+4+i)}')
    for i in range(4): g(f'v_add_f32 {V(YA+8+i)}, {V(YA+8+i)}, {V(YA+12+i)}')
    for i in range(4): g(f'v_permlane32_swap_b32 {V(YA+i)}, {V(YA+8+i)}')
    for i in range(4): g(f'v_add_f32 v{8+i}, {V(YA+i)}, {V(YA+8+i)}')
    g(f"""
    ds_write_b128 v27, v[8:11]
    s_waitcnt lgkmcnt(0)
    s_barrier
    s_cmp_ge_u32 {sW}, 4
    s_cbranch_scc1 L_end
    """)
    for k in range(4): g(f'ds_read2st64_b32 {V(8+2*k,2)}, v28 offset0:{8*k} offset1:{8*k+4}')
    g(f"""
    s_mov_b32 s44, 0x55555555
    s_mov_b32 s45, 0x55555555
    s_waitcnt lgkmcnt(2)
    v_add_f32 v8, v8, v9
    v_add_f32 v10, v10, v11
    s_waitcnt lgkmcnt(0)
    v_add_f32 v12, v12, v13
    v_add_f32 v14, v14, v15
    v_add_f32 v8, v8, v10
    v_add_f32 v12, v12, v14
    v_add_f32 v8, v8, v12
    v_mov_b32_dpp v9, v8 quad_perm:[1,0,3,2] row_mask:0xf bank_mask:0xf
    v_cvt_pk_bf16_f32 v8, v8, v9
    s_mov_b64 exec, {sM}
    global_store_dword v29, v8, {pWS} sc1
    s_mov_b64 exec, -1
    """)
    g.stamp(15)
    g('s_branch L_end')
    WB, HD, SA_, SB_, H0, AF, DG = 64, 96, 128, 132, 136, 144, 172
    def h_prep():
        g(f'''
        s_lshl_b32 {t0}, {sW}, 10
        v_lshrrev_b32 v8, 1, {vG}
        v_lshlrev_b32 v8, 8, v8
        v_lshl_add_u32 v8, {vN}, 4, v8
        v_and_b32 v9, 1, {vG}
        v_lshl_add_u32 v30, v9, 3, v8
        v_add_u32 v8, {t0}, v30
        global_load_dwordx2 v[16:17], v8, {pX}
        global_load_dwordx2 v[18:19], v8, {pX} offset:512
        v_and_b32 v9, 1, {vN}
        v_cmp_eq_u32 vcc, 1, v9
        v_mov_b32 v10, 0x3f80
        v_mov_b32 v11, 0x3f800000
        v_cndmask_b32 v10, v10, v11, vcc
        v_lshrrev_b32 v9, 1, {vN}
        ''')
        for j in range(8):
            g(f'v_cmp_eq_u32 vcc, {j}, v9')
            g(f'v_cndmask_b32 {V(SA_+j)}, 0, v10, vcc')
        g(f'''
        s_lshl_b32 {t0}, {sW}, 7
        s_add_u32 {t0}, {t0}, {WS_HPART}
        v_lshrrev_b32 v8, 3, {vN}
        v_lshlrev_b32 v8, 12, v8
        v_lshl_add_u32 v8, {vG}, 9, v8
        v_and_b32 v9, 7, {vN}
        v_lshl_add_u32 v8, v9, 4, v8
        v_add_u32 v26, {t0}, v8
        v_add_u32 v27, 0x2000, v26
        v_add_u32 v28, 0x4000, v26
        v_add_u32 v29, 0x6000, v26
        s_waitcnt vmcnt(0)
        ''')
        for al in range(2):
            for k in range(2):
                g(f'v_lshlrev_b32 {V(H0+4*al+2*k)}, 16, v{16+2*al+k}')
                g(f'v_and_b32 {V(H0+4*al+2*k+1)}, 0xffff0000, v{16+2*al+k}')
    def h_gather():
        if o['isleep'] >= 0:
            g(f'''
            s_and_b32 {t0}, {t3}, 7
            s_lshl_b32 {t0}, {t0}, 12
            s_lshl_b32 {t1}, {sW}, 7
            s_add_u32 {t0}, {t0}, {t1}
            s_add_u32 {t0}, {t0}, {WS_HPART}
            v_and_b32 v9, 7, {vL}
            v_lshlrev_b32 v9, 9, v9
            v_add_u32 v9, {t0}, v9
            ''')
            lab = poll_begin(g, 'pi')
            g(f'''
            global_load_dword v10, v9, {pWS} sc1
            s_waitcnt vmcnt(0)
            v_cmp_eq_u32 vcc, -1, v10
            ''')
            poll_end(g, lab, o['isleep'])
        lab = poll_begin(g, 'ph')
        for tau in range(4):
            for u in range(2):
                g(f'global_load_dwordx4 {V(HD+8*tau+4*u,4)}, v{26+tau}, {pWS} offset:{u*2048} sc1')
        g('s_waitcnt vmcnt(0)')
        check_sent(g, 'v8', [V(HD+k) for k in range(32)])
        poll_end(g, lab)
        for k in range(4):
            for al in range(2):
                tau = 2*al + (k >> 1)
                g(f'{MFMA} {V(H0+4*al,4)}, {V(SA_ + 4*(k>>1),4)}, {V(HD+8*tau+4*(k&1),4)}, {V(H0+4*al,4)}')
    g(f'''
    L_f1:
    s_mul_i32 {t0}, {sX}, 14
    s_add_u32 {t3}, {t3}, {t0}
    s_mul_i32 {t0}, {sW}, {64*3584}
    s_lshl_b32 {t1}, {t3}, 5
    s_add_u32 {t0}, {t0}, {t1}
    v_lshrrev_b32 v8, 1, {vL}
    v_mul_u32_u24 v8, 3584, v8
    v_and_b32 v9, 1, {vL}
    v_lshl_add_u32 v8, v9, 4, v8
    v_add_u32 v8, {t0}, v8
    v_add_u32 v9, {32*3584}, v8
    s_lshl_b32 {t2}, {sW}, 13
    s_add_u32 {t2}, {t2}, {L_ROLE}
    ''')
    for mat in range(2):
        for j in range(2):
            g(f's_add_u32 m0, {t2}, {(mat*2+j)*1024}')
            g(f'global_load_lds_dwordx4 v{8+j}, {pWU if mat else pWG} {nt}')
    g(f'''
    v_bfe_u32 v8, {vL}, 2, 2
    v_lshl_add_u32 v8, {vG}, 3, v8
    v_lshlrev_b32 v8, 5, v8
    v_and_b32 v9, 3, {vL}
    v_lshl_add_u32 v8, v9, 3, v8
    v_add_u32 v31, {t2}, v8
    v_and_b32 v8, 3, {vN}
    v_mul_u32_u24 v8, 1088, v8
    v_lshl_add_u32 v8, {vG}, 4, v8
    s_lshl_b32 {t0}, {sW}, 7
    s_add_u32 {t0}, {t0}, {L_HN}
    v_add_u32 v32, {t0}, v8
    s_lshl_b32 {t0}, {sW}, 9
    s_add_u32 {t0}, {t0}, {L_RED}
    v_lshlrev_b32 v8, 4, {vN}
    v_add_u32 v33, {t0}, v8
    v_lshl_add_u32 v8, {vG}, 2, v8
    v_add_u32 v34, {L_RED}, v8
    s_lshl_b32 {t0}, {t3}, 7
    s_add_u32 {t0}, {t0}, {WS_ACT}
    v_lshrrev_b32 v8, 3, {vN}
    v_lshlrev_b32 v8, 6, v8
    v_lshl_add_u32 v8, {vG}, 4, v8
    v_and_b32 v9, 7, {vN}
    v_lshl_add_u32 v8, v9, 1, v8
    v_add_u32 v35, {t0}, v8
    s_cmp_ge_u32 {sW}, 4
    s_cbranch_scc1 L_f1_w
    ''')
    h_prep()
    g(f'''
    s_mul_i32 {t0}, {sW}, 1088
    s_add_u32 {t0}, {t0}, {L_HN}
    v_add_u32 v30, {t0}, v30
    L_f1_w:
    s_waitcnt vmcnt(0)
    ''')
    for mat in range(2):
        for j in range(2):
            for a in range(2):
                g(f'ds_read_b64_tr_b16 {V(WB+(mat*2+j)*4+2*a,2)}, v31 offset:{(mat*2+j)*1024 + a*128}')
    g.stamp(13)
    g(f'''
    s_cmp_ge_u32 {sW}, 4
    s_cbranch_scc1 L_f1_b
    ''')
    h_gather()
    g.stamp(14)
    g(f'''
    v_add_f32 v8, {V(H0)}, {V(H0+1)}
    v_mul_f32 v9, {V(H0)}, {V(H0)}
    v_add_f32 v10, {V(H0+2)}, {V(H0+3)}
    v_fmac_f32 v9, {V(H0+1)}, {V(H0+1)}
    v_add_f32 v11, {V(H0+4)}, {V(H0+5)}
    v_fmac_f32 v9, {V(H0+2)}, {V(H0+2)}
    v_add_f32 v12, {V(H0+6)}, {V(H0+7)}
    v_fmac_f32 v9, {V(H0+3)}, {V(H0+3)}
    v_add_f32 v8, v8, v10
    v_fmac_f32 v9, {V(H0+4)}, {V(H0+4)}
    v_add_f32 v11, v11, v12
    v_fmac_f32 v9, {V(H0+5)}, {V(H0+5)}
    v_add_f32 v8, v8, v11
    v_fmac_f32 v9, {V(H0+6)}, {V(H0+6)}
    v_fmac_f32 v9, {V(H0+7)}, {V(H0+7)}
    ''')
    allreduce(g, 'v_add_f32', ['v8', 'v9'], ['v10', 'v11'])
    g(f'''
    v_mul_f32 v8, {hex(f2i(1/512))}, v8
    v_mul_f32 v9, {hex(f2i(1/512))}, v9
    v_fma_f32 v9, -v8, v8, v9
    v_max_f32 v9, 0, v9
    v_add_f32 v9, {hex(f2i(1e-5))}, v9
    v_rsq_f32 v9, v9
    ''')
    for k in range(8): g(f'v_sub_f32 v{12+k}, {V(H0+k)}, v8')
    for k in range(8): g(f'v_mul_f32 v{12+k}, v{12+k}, v9')
    for k in range(4): g(f'v_cvt_pk_bf16_f32 v{12+k}, v{12+2*k}, v{13+2*k}')
    g(f'''
    ds_write_b64 v30, v[12:13]
    ds_write_b64 v30, v[14:15] offset:512
    L_f1_b:
    s_waitcnt lgkmcnt(0)
    s_barrier
    ds_read_b128 {V(AF,4)}, v32
    ds_read_b128 {V(AF+4,4)}, v32 offset:64
    s_waitcnt lgkmcnt(1)
    {MFMA} {V(DG,4)}, {V(AF,4)}, {V(WB,4)}, 0
    {MFMA} {V(DG+4,4)}, {V(AF,4)}, {V(WB+8,4)}, 0
    s_waitcnt lgkmcnt(0)
    {MFMA} {V(DG,4)}, {V(AF+4,4)}, {V(WB+4,4)}, {V(DG,4)}
    {MFMA} {V(DG+4,4)}, {V(AF+4,4)}, {V(WB+12,4)}, {V(DG+4,4)}
    s_mov_b64 exec, 0xffff
    ds_write_b128 v33, {V(DG,4)}
    ds_write_b128 v33, {V(DG+4,4)} offset:256
    s_mov_b64 exec, -1
    s_waitcnt lgkmcnt(0)
    s_barrier
    s_cmp_lg_u32 {sW}, 0
    s_cbranch_scc1 L_end
    ''')
    for k in range(8): g(f'ds_read2st64_b32 {V(8+2*k,2)}, v34 offset0:{2*k} offset1:{2*k+1}')
    C1 = -2 * 1.4426950408889634 * 0.7978845608028654
    g(f'''
    s_mov_b32 s44, 0x55555555
    s_mov_b32 s45, 0x55555555
    s_mov_b32 {t0}, {hex(f2i(C1*0.044715))}
    v_mov_b32 v24, {hex(f2i(C1))}
    s_waitcnt lgkmcnt(4)
    v_add_f32 v8, v8, v10
    v_add_f32 v9, v9, v11
    v_add_f32 v12, v12, v14
    v_add_f32 v13, v13, v15
    s_waitcnt lgkmcnt(0)
    v_add_f32 v16, v16, v18
    v_add_f32 v20, v20, v22
    v_add_f32 v8, v8, v12
    v_add_f32 v16, v16, v20
    v_add_f32 v17, v17, v19
    v_add_f32 v8, v8, v16
    v_add_f32 v21, v21, v23
    v_mul_f32 v10, v8, v8
    v_add_f32 v9, v9, v13
    v_fma_f32 v10, v10, {t0}, v24
    v_add_f32 v17, v17, v21
    v_mul_f32 v10, v10, v8
    v_add_f32 v9, v9, v17
    v_exp_f32 v10, v10
    v_mul_f32 v8, v8, v9
    v_add_f32 v10, 1.0, v10
    v_rcp_f32 v10, v10
    v_mul_f32 v8, v8, v10
    v_mov_b32_dpp v9, v8 quad_perm:[1,0,3,2] row_mask:0xf bank_mask:0xf
    v_cvt_pk_bf16_f32 v8, v8, v9
    s_mov_b64 exec, {sM}
    global_store_dword v35, v8, {pWS} sc1
    s_mov_b64 exec, -1
    ''')
    g.stamp(15)
    g('s_branch L_end')
    g(f'''
    L_f2:
    s_lshl_b32 {t0}, {sX}, 2
    s_add_u32 {t3}, {t3}, {t0}
    s_mul_i32 {t0}, {sW}, {224*1024}
    s_lshl_b32 {t1}, {t3}, 5
    s_add_u32 {t0}, {t0}, {t1}
    v_lshrrev_b32 v8, 1, {vL}
    v_lshlrev_b32 v8, 10, v8
    v_and_b32 v9, 1, {vL}
    v_lshl_add_u32 v8, v9, 4, v8
    v_add_u32 v8, {t0}, v8
    s_lshl_b32 {t2}, {sW}, 13
    s_add_u32 {t2}, {t2}, {L_ROLE}
    ''')
    for j in range(7):
        g(f's_add_u32 m0, {t2}, {j*1024}')
        if j: g(f'v_add_u32 v8, 0x8000, v8')
        g(f'global_load_lds_dwordx4 v8, {pWD} {nt}')
    g(f'''
    v_bfe_u32 v8, {vL}, 2, 2
    v_lshl_add_u32 v8, {vG}, 3, v8
    v_lshlrev_b32 v8, 5, v8
    v_and_b32 v9, 3, {vL}
    v_lshl_add_u32 v8, v9, 3, v8
    v_add_u32 v31, {t2}, v8
    s_mul_i32 {t0}, {sW}, 1792
    s_add_u32 {t0}, {t0}, {WS_ACT}
    v_and_b32 v8, 3, {vN}
    v_lshlrev_b32 v8, 4, v8
    v_lshl_add_u32 v8, {vG}, 6, v8
    v_add_u32 v32, {t0}, v8
    s_lshl_b32 {t0}, {sW}, 8
    s_add_u32 {t0}, {t0}, {L_RED}
    v_lshlrev_b32 v8, 4, {vN}
    v_add_u32 v33, {t0}, v8
    v_lshl_add_u32 v8, {vG}, 2, v8
    v_add_u32 v34, {L_RED}, v8
    s_lshl_b32 {t0}, {t3}, 6
    s_add_u32 {t0}, {t0}, {L_H32}
    v_lshlrev_b32 v8, 11, {vG}
    v_lshl_add_u32 v8, {vN}, 2, v8
    v_add_u32 v35, {t0}, v8
    s_lshl_b32 {t0}, {t3}, 5
    v_lshlrev_b32 v8, 10, {vG}
    v_lshl_add_u32 v8, {vN}, 1, v8
    v_add_u32 v36, {t0}, v8
    s_cmp_ge_u32 {sW}, 4
    s_cbranch_scc1 L_f2_w
    ''')
    h_prep()
    g(f'''
    s_lshl_b32 {t0}, {sW}, 11
    s_add_u32 {t0}, {t0}, {L_H32}
    v_lshlrev_b32 v30, 1, v30
    v_add_u32 v30, {t0}, v30
    L_f2_w:
    s_waitcnt vmcnt(0)
    ''')
    for j in range(7):
        for a in range(2):
            g(f'ds_read_b64_tr_b16 {V(WB+4*j+2*a,2)}, v31 offset:{j*1024 + a*128}')
    g.stamp(13)
    g(f'''
    s_cmp_ge_u32 {sW}, 4
    s_cbranch_scc1 L_f2_a
    ''')
    h_gather()
    g(f'''
    ds_write_b128 v30, {V(H0,4)}
    ds_write_b128 v30, {V(H0+4,4)} offset:1024
    L_f2_a:
    s_barrier
    ''')
    g.stamp(12)
    lab = poll_begin(g, 'pa')
    for j in range(7): g(f'global_load_dwordx4 {V(AF+4*j,4)}, v32, {pWS} offset:{j*256} sc1')
    g('s_waitcnt vmcnt(0)')
    check_sent(g, 'v8', [V(AF+k) for k in range(28)])
    poll_end(g, lab)
    g.stamp(14)
    g('s_waitcnt lgkmcnt(0)')
    for j in range(7): g(f'{MFMA} {V(DG,4)}, {V(AF+4*j,4)}, {V(WB+4*j,4)}, {V(DG,4) if j else 0}')
    g(f'''
    s_mov_b64 exec, 0xffff
    ds_write_b128 v33, {V(DG,4)}
    s_mov_b64 exec, -1
    s_waitcnt lgkmcnt(0)
    s_barrier
    s_cmp_lg_u32 {sW}, 0
    s_cbranch_scc1 L_end
    ''')
    for k in range(4): g(f'ds_read2st64_b32 {V(8+2*k,2)}, v34 offset0:{2*k} offset1:{2*k+1}')
    g(f'''
    ds_read_b32 v16, v35
    s_mov_b32 s44, 0x55555555
    s_mov_b32 s45, 0x55555555
    s_waitcnt lgkmcnt(3)
    v_add_f32 v8, v8, v9
    v_add_f32 v10, v10, v11
    s_waitcnt lgkmcnt(0)
    v_add_f32 v12, v12, v13
    v_add_f32 v14, v14, v15
    v_add_f32 v8, v8, v10
    v_add_f32 v12, v12, v14
    v_add_f32 v8, v8, v16
    v_add_f32 v8, v8, v12
    v_mov_b32_dpp v9, v8 quad_perm:[1,0,3,2] row_mask:0xf bank_mask:0xf
    v_cvt_pk_bf16_f32 v8, v8, v9
    s_mov_b64 exec, {sM}
    global_store_dword v36, v8, {pOUT}
    s_cmp_lg_u32 {t3}, 0
    s_cbranch_scc1 L_noep
    s_mov_b64 exec, 1
    v_mov_b32 v10, {WS_EPOCH}
    v_mov_b32 v11, {sTAG}
    global_store_dword v10, v11, {pWS} sc1
    L_noep:
    s_mov_b64 exec, -1
    ''')
    g.stamp(15)
    g('L_end:')
    if o['stamps']:
        g('s_waitcnt lgkmcnt(0)')
        for k in range(16): g(f'v_writelane_b32 v4, s{64+2*k}, {k}')
        g(f'''
        s_lshl_b32 {t0}, s2, 3
        s_add_u32 {t0}, {t0}, {sW}
        s_lshl_b32 {t0}, {t0}, 6
        s_add_u32 {t0}, {t0}, {WS_STAMP}
        v_lshlrev_b32 v5, 2, {vL}
        v_add_u32 v5, {t0}, v5
        s_mov_b64 exec, 0xffff
        global_store_dword v5, v4, {pWS}
        ''')
    g('L_exit:')
    g('s_endpgm')
    body, nadd = hazfix.fix('\n'.join(g.L))
    head = f'''; Fused pre-LN compressed-KV attention + GEGLU FFN decode step, one persistent launch (256 workgroups).
; @launch grid=(256,1,1) block=(512,1,1) lds={LDS_BYTES}
.amdgcn_target "amdgcn-amd-amdhsa--gfx950"
.text
.globl {NAME}
.p2align 8
.type {NAME},@function
{NAME}:
'''
    tail = f'''
.section .rodata,"a"
.p2align 6
.amdhsa_kernel {NAME}
  .amdhsa_next_free_vgpr 256
  .amdhsa_next_free_sgpr {96 if o['stamps'] else 48}
  .amdhsa_accum_offset 256
  .amdhsa_group_segment_fixed_size 0
  .amdhsa_kernarg_size 104
  .amdhsa_user_sgpr_count 2
  .amdhsa_user_sgpr_kernarg_segment_ptr 1
  .amdhsa_system_sgpr_workgroup_id_x 1
.end_amdhsa_kernel
'''
    return head + body + tail

if __name__ == '__main__':
    opt = {}
    for a in sys.argv[2:]:
        k, v = a.split('=')
        opt[k] = int(v) if v.lstrip('-').isdigit() else v
    open(sys.argv[1], 'w').write(gen(opt))
```

```python
import sys, struct
import hazfix

NAME = 'sequential_preLN__compressed_kv_cla__geglu_ffn__decode_kernel'

WS_EPOCH = 0
WS_FLAGP = 0x1000
WS_FLAGN = 0x2000
WS_QABS  = 0x10000
WS_CLR   = 0x100000
WS_PART  = WS_CLR
WS_STAT  = WS_PART + 0x400000
WS_CTX   = WS_STAT + 0x8000
WS_HPART = WS_CTX + 0x20000
WS_ACT   = WS_HPART + 0x8000
CLR_PER  = 34 * 1024
WS_STAMP = 0x800000

L_CKV = 0
L_QA  = 0x20000
L_PL  = 0x24000
L_MX  = 0x25200
L_XN  = 0x25800
L_Q   = 0x26800
L_CC  = 0x27000
L_WT  = 0x27900
LDS_BYTES = 0x28000
L_WV   = 0
L_ROLE = 40960
L_RED  = L_QA
L_HN   = L_QA + 0x2000
L_H32  = L_QA + 0x2000

def f2i(x): return struct.unpack('<I', struct.pack('<f', x))[0]
SCALE = (128 ** -0.5) * 1.4426950408889634

class G:
    def __init__(self, opt):
        self.o = opt
        self.L = []
        self.nst = 0
        self.uid = 0
    def __call__(self, s):
        for line in s.strip('\n').split('\n'):
            line = line.rstrip()
            if not line.strip(): continue
            t = line.strip()
            self.L.append(t if t.endswith(':') else '    ' + t)
    def lab(self, p):
        self.uid += 1
        return f'L_{p}{self.uid}'
    def stamp(self, k):
        if self.o.get('stamps'):
            self(f's_memrealtime s[{64+2*k}:{65+2*k}]')

pX, pCKV, pWQ, pWUK, pWUV, pWO, pWG, pWU, pWD, pOUT, pWS = ('s[4:5]','s[6:7]','s[8:9]','s[10:11]','s[12:13]','s[14:15]','s[18:19]','s[20:21]','s[22:23]','s[24:25]','s[28:29]')
sW, sX, sR, sTAG, sCNT = 's3', 's30', 's31', 's32', 's33'
sB, sHH, sS, sH, sCQ = 's34', 's35', 's36', 's37', 's38'
t0, t1, t2, t3 = 's40', 's41', 's42', 's43'
sM = 's[44:45]'
vL, vN, vG = 'v1', 'v2', 'v3'
def V(a, n=1): return f'v{a}' if n == 1 else f'v[{a}:{a+n-1}]'
MFMA = 'v_mfma_f32_16x16x32_bf16'

def allreduce(g, op, regs, tmps, full=True):
    for k in (1, 2, 4, 8):
        for r in regs:
            g(f'{op}_dpp {r}, {r}, {r} row_ror:{k} row_mask:0xf bank_mask:0xf')
    if full:
        for sw in ('v_permlane16_swap_b32', 'v_permlane32_swap_b32'):
            for r, t in zip(regs, tmps): g(f'v_mov_b32 {t}, {r}')
            for r, t in zip(regs, tmps): g(f'{sw} {t}, {r}')
            for r, t in zip(regs, tmps): g(f'{op} {r}, {r}, {t}')

def rne(g, r):
    g(f'v_cvt_pk_bf16_f32 {r}, {r}, {r}')
    g(f'v_and_b32 {r}, 0xffff0000, {r}')

def poll_begin(g, name):
    lab = g.lab(name)
    g(f's_mov_b32 {sCNT}, 0')
    g(f'{lab}:')
    return lab
def poll_end(g, lab, sleep=None):
    done = lab + '_ok'
    if sleep is None: sleep = g.o.get('sleep', 0)
    g(f"""
    s_cbranch_vccz {done}
    {'s_mov_b64 exec, vcc' if g.o['mask'] else ''}
    {'s_sleep '+str(sleep) if sleep else ''}
    s_add_u32 {sCNT}, {sCNT}, 1
    s_cmp_lt_u32 {sCNT}, {g.o.get('maxpoll', 65536)}
    s_cbranch_scc1 {lab}
    {done}:
    {'s_mov_b64 exec, -1' if g.o['mask'] else ''}
    """)
def check_sent(g, tmp, regs):
    regs = list(regs)
    if len(regs) == 1:
        g(f'v_cmp_eq_u32 vcc, -1, {regs[0]}'); return
    if len(regs) == 2:
        g(f'v_max_u32 {tmp}, {regs[0]}, {regs[1]}'); rest = []
    else:
        g(f'v_max3_u32 {tmp}, {regs[0]}, {regs[1]}, {regs[2]}'); rest = regs[3:]
    while rest:
        if len(rest) >= 2:
            g(f'v_max3_u32 {tmp}, {tmp}, {rest[0]}, {rest[1]}'); rest = rest[2:]
        else:
            g(f'v_max_u32 {tmp}, {tmp}, {rest[0]}'); rest = []
    g(f'v_cmp_eq_u32 vcc, -1, {tmp}')

sLDB = 's39'
aCK = 25
def ckv_addr(g):
    g(f"""
    s_lshl_b32 {t0}, {sB}, 22
    s_lshl_b32 {t1}, {sS}, 17
    s_add_u32 {t0}, {t0}, {t1}
    s_lshl_b32 {sLDB}, {sW}, 15
    s_add_u32 {t0}, {t0}, {sLDB}
    v_lshlrev_b32 v8, 4, {vL}
    v_add_u32 {V(aCK)}, {t0}, v8
    """)
def ckv_dma(g, groups, rev):
    nt = g.o['nt']
    for j in groups:
        g(f's_add_u32 m0, {sLDB}, {j*4096}')
        for q in (range(3, -1, -1) if rev else range(4)):
            i = 4*j + q
            f = (i & 15) ^ ((i & 1) << 3)
            g(f'v_xor_b32 v9, {hex((j << 12) | (f << 4))}, {V(aCK)}')
            g(f'global_load_lds_dwordx4 v9, {pCKV} offset:{q*1024} {nt}')
def tag(g):
    g(f"""
    s_mul_i32 {sTAG}, {sTAG}, 0x19660d
    s_add_u32 {sTAG}, {sTAG}, 0x3c6ef35f
    """)

AQ, AS, AV = 26, 30, 34
aMXw, aMXr, aPLw, aPLr, aPT, aSM, aGQ, aQW, aFN = 50, 51, 52, 53, 54, 55, 56, 57, 61
aWS, aWVw, aWVr, aST, aDT, aCCw, aCCr, aCT, aWTw, aWTr = 62, 63, 248, 249, 250, 251, 252, 253, 254, 255
XM, XS = 4, 22
QFR, SFR, SA, PF, OA, LA, ST = 64, 128, 192, 196, 212, 228, 232
GQ = PF

def setup_att(g):
    g(f"""
    L_setup:
    v_xor_b32 v8, {vN}, {vG}
    v_lshlrev_b32 v8, 4, v8
    v_lshl_add_u32 v8, {vN}, 10, v8
    v_add_u32 {V(AQ)}, {L_QA}, v8
    v_xor_b32 {V(AQ+1)}, 64, {V(AQ)}
    v_xor_b32 {V(AQ+2)}, 128, {V(AQ)}
    v_xor_b32 {V(AQ+3)}, 192, {V(AQ)}
    v_and_b32 v8, 8, {vN}
    v_and_b32 v9, 3, {vN}
    v_lshl_add_u32 v8, v9, 1, v8
    v_bfe_u32 v9, {vN}, 2, 1
    v_add_u32 v8, v8, v9
    v_lshlrev_b32 v9, 3, v9
    v_xor_b32 v9, v9, v8
    v_xor_b32 v9, v9, {vG}
    v_lshlrev_b32 v9, 4, v9
    v_lshl_add_u32 v9, v8, 10, v9
    s_lshl_b32 {t0}, {sW}, 14
    v_add_u32 {V(AS)}, {t0}, v9
    v_xor_b32 {V(AS+1)}, 64, {V(AS)}
    v_xor_b32 {V(AS+2)}, 128, {V(AS)}
    v_xor_b32 {V(AS+3)}, 192, {V(AS)}
    v_bfe_u32 v8, {vL}, 2, 2
    v_lshlrev_b32 v8, 1, v8
    v_lshl_add_u32 v9, {vG}, 3, v8
    v_and_b32 v10, 15, v9
    v_bfe_u32 v11, {vL}, 1, 1
    s_lshl_b32 {t0}, {sW}, 3
    v_add_u32 v11, {t0}, v11
    v_xor_b32 v10, v10, v11
    v_lshlrev_b32 v10, 4, v10
    v_lshl_add_u32 v10, v9, 10, v10
    v_and_b32 v11, 1, {vL}
    v_lshl_add_u32 v10, v11, 3, v10
    """)
    for tau in range(4):
        for a in range(2):
            k = 2*tau + a
            g(f'v_xor_b32 {V(AV+k)}, {hex(((2*tau) ^ (9*a)) << 4)}, v10')
            g(f'v_xor_b32 {V(AV+8+k)}, {hex((((2*tau) ^ (9*a)) << 4) | 0x10000)}, v10')
    g(f"""
    s_lshl_b32 {t0}, {sW}, 2
    s_add_u32 {t0}, {t0}, {L_MX}
    v_lshlrev_b32 v8, 5, {vN}
    v_add_u32 {V(aMXw)}, {t0}, v8
    v_add_u32 {V(aMXr)}, {L_MX}, v8
    v_mul_u32_u24 v8, 272, {vN}
    v_add_u32 v8, {L_PL}, v8
    v_lshl_add_u32 {V(aPLr)}, {vG}, 4, v8
    v_lshl_add_u32 v8, {vG}, 3, v8
    s_lshl_b32 {t0}, {sW}, 5
    v_add_u32 {V(aPLw)}, {t0}, v8
    s_lshl_b32 {t0}, {sHH}, 21
    s_lshr_b32 {t1}, {sW}, 1
    s_lshl_b32 {t1}, {t1}, 15
    s_add_u32 {t0}, {t0}, {t1}
    s_lshl_b32 {t1}, {sB}, 13
    s_add_u32 {t0}, {t0}, {t1}
    s_lshl_b32 {t1}, {sS}, 8
    s_add_u32 {t0}, {t0}, {t1}
    s_and_b32 {t1}, {sW}, 1
    s_lshl_b32 {t1}, {t1}, 7
    s_add_u32 {t0}, {t0}, {t1}
    s_add_u32 {t0}, {t0}, {WS_PART}
    v_lshlrev_b32 v8, 19, {vG}
    v_lshlrev_b32 v9, 3, {vN}
    v_add3_u32 {V(aPT)}, v8, v9, {t0}
    s_lshl_b32 {t0}, {sB}, 13
    s_lshl_b32 {t1}, {sHH}, 12
    s_add_u32 {t0}, {t0}, {t1}
    s_lshl_b32 {t1}, {sS}, 7
    s_add_u32 {t0}, {t0}, {t1}
    s_add_u32 {t0}, {t0}, {WS_STAT}
    v_add_u32 {V(aSM)}, {t0}, v9
    s_lshl_b32 {t0}, {sB}, 15
    s_lshl_b32 {t1}, {sHH}, 14
    s_add_u32 {t0}, {t0}, {t1}
    s_and_b32 {t1}, {sW}, 3
    s_lshl_b32 {t1}, {t1}, 12
    s_add_u32 {t0}, {t0}, {t1}
    s_add_u32 {t0}, {t0}, {WS_QABS}
    v_lshlrev_b32 v8, 4, {vL}
    v_add_u32 {V(aGQ)}, {t0}, v8
    v_add_u32 {V(aFN)}, {WS_FLAGN}, v8
    s_lshr_b32 {t0}, {t1}, 6
    v_xor_b32 v8, {t0}, v8
    s_add_u32 {t1}, {t1}, {L_QA}
    v_add_u32 {V(aQW)}, {t1}, v8
    v_xor_b32 {V(aQW+1)}, 16, {V(aQW)}
    v_xor_b32 {V(aQW+2)}, 32, {V(aQW)}
    v_xor_b32 {V(aQW+3)}, 48, {V(aQW)}
    s_setpc_b64 s[46:47]
    """)

def setup_x(g):
    g(f"""
    s_lshl_b32 {t0}, {sH}, 8
    s_lshl_b32 {t1}, {sCQ}, 20
    s_add_u32 {t0}, {t0}, {t1}
    s_lshr_b32 {t1}, {sW}, 2
    s_lshl_b32 {t1}, {t1}, 19
    s_add_u32 {t0}, {t0}, {t1}
    s_and_b32 {t1}, {sW}, 3
    s_lshl_b32 {t1}, {t1}, 15
    s_add_u32 {t0}, {t0}, {t1}
    v_lshlrev_b32 v8, 17, {vG}
    v_lshlrev_b32 v12, 4, {vN}
    v_add3_u32 {V(aWS)}, v8, v12, {t0}
    s_mul_i32 {t0}, {sW}, {16*288}
    v_mul_u32_u24 v8, 288, {vG}
    v_add3_u32 {V(aWVw)}, v8, v12, {t0}
    v_bfe_u32 v9, {vL}, 2, 2
    v_lshl_add_u32 v9, {vG}, 3, v9
    v_mul_u32_u24 v9, 288, v9
    v_and_b32 v10, 3, {vL}
    v_lshl_add_u32 v9, v10, 3, v9
    s_lshl_b32 {t0}, {sW}, 5
    v_add_u32 {V(aWVr)}, {t0}, v9
    s_and_b32 {t1}, {sW}, 1
    s_lshl_b32 {t0}, {t1}, 14
    s_lshr_b32 {t2}, {sH}, 4
    s_lshl_b32 {t2}, {t2}, 12
    s_add_u32 {t0}, {t0}, {t2}
    s_and_b32 {t2}, {sH}, 15
    s_lshl_b32 {t2}, {t2}, 3
    s_add_u32 {t0}, {t0}, {t2}
    s_add_u32 {t0}, {t0}, {WS_STAT}
    v_lshrrev_b32 v8, 5, {vL}
    v_lshlrev_b32 v8, 13, v8
    v_and_b32 v9, 31, {vL}
    v_lshlrev_b32 v9, 7, v9
    v_add3_u32 {V(aST)}, v8, v9, {t0}
    s_lshl_b32 {t0}, {t1}, 7
    s_add_u32 {t0}, {t0}, {L_WT}
    v_lshlrev_b32 v8, 1, {vL}
    v_add_u32 {V(aWTw)}, {t0}, v8
    s_lshl_b32 {t0}, {sW}, 5
    s_add_u32 {t0}, {t0}, {L_WT}
    v_lshlrev_b32 v8, 3, {vG}
    v_add_u32 {V(aWTr)}, {t0}, v8
    s_lshl_b32 {t0}, {sH}, 17
    s_lshl_b32 {t2}, {sCQ}, 15
    s_add_u32 {t0}, {t0}, {t2}
    s_lshl_b32 {t2}, {sW}, 12
    s_add_u32 {t0}, {t0}, {t2}
    s_add_u32 {t0}, {t0}, {WS_PART}
    v_lshlrev_b32 v9, 10, {vG}
    v_add3_u32 {V(aDT)}, v9, v12, {t0}
    s_mul_i32 {t0}, {sW}, 272
    s_add_u32 {t0}, {t0}, {L_CC}
    v_add3_u32 {V(aCCw)}, v8, v12, {t0}
    v_lshrrev_b32 v9, 2, {vN}
    v_and_b32 v10, 1, {vN}
    v_lshl_add_u32 v9, v9, 1, v10
    v_mul_u32_u24 v9, 272, v9
    v_lshl_add_u32 v9, {vG}, 4, v9
    v_add_u32 {V(aCCr)}, {L_CC}, v9
    s_lshl_b32 {t0}, {sH}, 12
    s_lshl_b32 {t2}, {sCQ}, 10
    s_add_u32 {t0}, {t0}, {t2}
    s_lshl_b32 {t2}, {sW}, 7
    s_add_u32 {t0}, {t0}, {t2}
    s_add_u32 {t0}, {t0}, {WS_CTX}
    v_and_b32 v11, 7, {vN}
    v_lshlrev_b32 v9, 1, v11
    v_lshl_add_u32 v9, {vG}, 4, v9
    v_lshrrev_b32 v8, 3, {vN}
    v_lshlrev_b32 v8, 6, v8
    v_add3_u32 {V(aCT)}, v8, v9, {t0}
    v_cmp_eq_u32 vcc, 1, v10
    v_mov_b32 v8, 0x0c0c0100
    v_mov_b32 v9, 0x01000c0c
    v_cndmask_b32 {V(XS)}, v8, v9, vcc
    v_mov_b32 v8, 0x0c0c0302
    v_mov_b32 v9, 0x03020c0c
    v_cndmask_b32 {V(XS+1)}, v8, v9, vcc
    v_lshrrev_b32 v11, 1, v11
    """)
    for j in range(4):
        g(f'v_cmp_eq_u32 vcc, {j}, v11')
        g(f'v_cndmask_b32 {V(XM+j)}, 0, -1, vcc')

def gen(opt):
    o = dict(nt='', stamps=False, maxpoll=65536, sleep=0, fsleep=4, touch=1, noclr=0, early=3, mask=1, isleep=2, tuk=1, wsoff=0, prio=1, nobc=0, ctouch=1)
    o.update(opt)
    g = G(o)
    nt = o['nt']
    g(f"""
    s_cmp_ge_u32 s2, 0x100
    s_cbranch_scc1 L_exit
    s_load_dwordx16 s[4:19], s[0:1], 0
    s_load_dwordx8 s[20:27], s[0:1], 64
    s_load_dwordx2 s[28:29], s[0:1], 96
    """)
    if o['ctouch']:
        g(f"""
        s_getpc_b64 s[40:41]
        s_lshr_b32 s42, s2, 3
        s_lshl_b32 s42, s42, 10
        v_lshlrev_b32 v4, 7, v0
        v_add_u32 v4, s42, v4
        v_min_u32 v4, L_exit-{NAME}-64, v4
        v_cmp_gt_u32 vcc, 8, v0
        s_and_saveexec_b64 s[44:45], vcc
        s_cbranch_execz L_noct
        global_load_dword v24, v4, s[40:41]
        L_noct:
        s_mov_b64 exec, -1
        """)
    if o['stamps']:
        for k in range(16): g(f's_mov_b32 s{64+2*k}, 0')
    g.stamp(0)
    g(f"""
    v_lshrrev_b32 v4, 6, v0
    v_and_b32 {vL}, 63, v0
    v_readfirstlane_b32 {sW}, v4
    v_and_b32 {vN}, 15, {vL}
    v_lshrrev_b32 {vG}, 4, {vL}
    s_and_b32 {sX}, s2, 7
    s_lshr_b32 {sR}, s2, 3
    s_lshr_b32 {sB}, {sX}, 1
    s_and_b32 {sHH}, {sR}, 1
    s_and_b32 {sS}, {sX}, 1
    s_lshl_b32 {sS}, {sS}, 4
    s_lshr_b32 {t0}, {sR}, 1
    s_add_u32 {sS}, {sS}, {t0}
    s_lshr_b32 {t0}, {sR}, 3
    s_lshl_b32 {sH}, {sX}, 2
    s_add_u32 {sH}, {sH}, {t0}
    s_bfe_u32 {sCQ}, {sR}, 0x20001
    """)
    if o['prio']:
        g(f"""
        s_cmp_lt_u32 {sW}, 4
        s_cbranch_scc1 L_noprio
        s_setprio 3
        L_noprio:
        """)
    for k in (26, 27, 28, 29, aPT, aSM, aGQ, aFN, aST, aDT, aCT): g(f'v_mov_b32 v{k}, 0')
    g(f"""
    s_waitcnt lgkmcnt(0)
    {'s_add_u32 s28, s28, '+hex(o['wsoff']) if o['wsoff'] else ''}
    {'s_addc_u32 s29, s29, 0' if o['wsoff'] else ''}
    s_cmp_eq_u32 {sHH}, 1
    s_load_dword {sTAG}, {pWS}, {WS_EPOCH}
    s_cbranch_scc1 L_nonp
    """)
    WQ, AP, SEL, D1, D2, WUKF, QF, DQ = 64, 128, 160, 164, 168, 172, 188, 204
    LT = 208
    pQPw, pWK, pQPr, pQw, pQr, pQOw, pQOr, pPUB, pFP, pFD = 216, 217, 221, 222, 223, 224, 225, 226, 227, 228
    g(f"""
    s_cmp_lt_u32 {sW}, 4
    s_cbranch_scc1 L_p_issue
    s_and_b32 {t0}, {sW}, 3
    s_lshl_b32 {t0}, {t0}, 10
    v_lshlrev_b32 v9, 4, {vL}
    v_add_u32 v9, {t0}, v9
    global_load_dwordx4 v[4:7], v9, {pX}
    s_cmp_lg_u32 {sW}, 7
    s_cbranch_scc1 L_p_noclr
    s_lshl_b32 {t0}, {sH}, 10
    s_lshl_b32 {t1}, {sCQ}, 8
    s_add_u32 {t0}, {t0}, {t1}
    s_add_u32 {t0}, {t0}, {WS_QABS}
    v_lshlrev_b32 v8, 15, {vG}
    v_lshl_add_u32 v8, {vN}, 4, v8
    v_add_u32 v8, {t0}, v8
    v_mov_b32 v12, -1
    v_mov_b32 v13, -1
    v_mov_b32 v14, -1
    v_mov_b32 v15, -1
    global_store_dwordx4 v8, v[12:15], {pWS} sc1
    L_p_noclr:
    s_setprio 0
    s_call_b64 s[46:47], L_setup
    s_waitcnt lgkmcnt(0)
    """)
    tag(g)
    g(f"""
    s_waitcnt vmcnt(0)
    s_cmp_lg_u32 {sW}, 7
    s_cbranch_scc1 L_p_ln
    s_lshl_b32 {t0}, {sX}, 7
    s_lshl_b32 {t1}, {sR}, 2
    s_add_u32 {t0}, {t0}, {t1}
    s_add_u32 {t0}, {t0}, {WS_FLAGP}
    v_mov_b32 v8, {t0}
    v_mov_b32 v10, {sTAG}
    v_mov_b32 v11, {sTAG}
    s_mov_b64 exec, 1
    global_store_dwordx2 v8, v[10:11], {pWS} sc1
    s_mov_b64 exec, -1
    L_p_ln:
    """)
    for k in range(4):
        g(f'v_lshlrev_b32 v{8+2*k}, 16, v{4+k}')
        g(f'v_and_b32 v{9+2*k}, 0xffff0000, v{4+k}')
    g("""
    v_add_f32 v16, v8, v9
    v_add_f32 v17, v10, v11
    v_add_f32 v18, v12, v13
    v_add_f32 v19, v14, v15
    v_add_f32 v16, v16, v17
    v_add_f32 v18, v18, v19
    v_add_f32 v16, v16, v18
    """)
    allreduce(g, 'v_add_f32', ['v16'], ['v17'])
    g(f'v_mul_f32 v16, {hex(f2i(1/512))}, v16')
    for k in range(8): g(f'v_sub_f32 v{LT+k}, v{8+k}, v16')
    g(f'v_mul_f32 v18, v{LT}, v{LT}')
    for k in range(1, 8): g(f'v_fmac_f32 v18, v{LT+k}, v{LT+k}')
    allreduce(g, 'v_add_f32', ['v18'], ['v17'])
    g(f'v_mul_f32 v18, {hex(f2i(1/512))}, v18')
    rne(g, 'v16'); rne(g, 'v18')
    g(f'v_add_f32 v18, {hex(f2i(1e-5))}, v18')
    rne(g, 'v18')
    g('v_sqrt_f32 v18, v18')
    rne(g, 'v18')
    g('v_rcp_f32 v18, v18')
    for k in range(8): g(f'v_sub_f32 v{8+k}, v{8+k}, v16')
    for k in range(4): g(f'v_cvt_pk_bf16_f32 v{4+k}, v{8+2*k}, v{9+2*k}')
    for k in range(4):
        g(f'v_lshlrev_b32 v{8+2*k}, 16, v{4+k}')
        g(f'v_and_b32 v{9+2*k}, 0xffff0000, v{4+k}')
    for k in range(8): g(f'v_mul_f32 v{8+k}, v{8+k}, v18')
    for k in range(4): g(f'v_cvt_pk_bf16_f32 v{4+k}, v{8+2*k}, v{9+2*k}')
    g(f"""
    s_and_b32 {t0}, {sW}, 3
    s_lshl_b32 {t0}, {t0}, 10
    s_add_u32 {t0}, {t0}, {L_XN}
    v_lshlrev_b32 v9, 4, {vL}
    v_add_u32 v9, {t0}, v9
    ds_write_b128 v9, v[4:7]
    s_waitcnt lgkmcnt(0)
    s_barrier
    L_p_issue:
    s_lshr_b32 {t3}, {sCQ}, 1
    s_lshl_b32 {t3}, {t3}, 2
    s_xor_b32 {t3}, {t3}, {sW}
    s_lshl_b32 {t0}, {t3}, 19
    s_and_b32 {t1}, {sCQ}, 1
    s_lshl_b32 {t1}, {t1}, 18
    s_or_b32 {t0}, {t0}, {t1}
    s_lshl_b32 {t1}, {sH}, 8
    s_or_b32 {t0}, {t0}, {t1}
    v_lshlrev_b32 v10, 14, {vG}
    v_lshl_add_u32 v10, {vN}, 4, v10
    v_add_u32 v10, {t0}, v10
    """)
    for i in range(8):
        for p in range(2):
            g(f'v_xor_b32 v11, {hex((i << 16) | (p << 13))}, v10')
            g(f'global_load_dwordx4 {V(WQ+8*i+4*p,4)}, v11, {pWQ} {nt}')
    g(f"""
    s_lshl_b32 {t0}, {sCQ}, 20
    s_lshl_b32 {t1}, {sW}, 17
    s_or_b32 {t0}, {t0}, {t1}
    s_lshl_b32 {t1}, {sH}, 8
    s_or_b32 {t0}, {t0}, {t1}
    v_xor_b32 v12, {vN}, {vG}
    v_lshlrev_b32 v12, 4, v12
    v_lshl_add_u32 v10, {vG}, 13, v12
    v_add_u32 v10, {t0}, v10
    s_lshl_b32 {t2}, {sW}, 14
    """)
    for u in range(4):
        g(f's_add_u32 m0, {t2}, {u*1024}')
        g(f'v_xor_b32 v11, {hex((u << 15) | (u << 6))}, v10')
        g(f'global_load_lds_dwordx4 v11, {pWUK} {nt}')
    g.stamp(1)
    g(f"""
    v_lshl_add_u32 v12, {vN}, 8, v12
    v_add_u32 {V(pWK)}, {t2}, v12
    v_xor_b32 {V(pWK+1)}, 64, {V(pWK)}
    v_xor_b32 {V(pWK+2)}, 128, {V(pWK)}
    v_xor_b32 {V(pWK+3)}, 192, {V(pWK)}
    v_and_b32 v8, 1, {vN}
    v_cmp_eq_u32 vcc, 1, v8
    v_mov_b32 v10, 0x0c0c0100
    v_mov_b32 v11, 0x01000c0c
    v_mov_b32 v12, 0x0c0c0302
    v_mov_b32 v13, 0x03020c0c
    v_cndmask_b32 v10, v10, v11, vcc
    v_cndmask_b32 v12, v12, v13, vcc
    v_and_b32 v8, 2, {vN}
    v_cmp_eq_u32 vcc, 0, v8
    v_mov_b32 v11, 0x0c0c0c0c
    v_cndmask_b32 {V(SEL)}, v11, v10, vcc
    v_cndmask_b32 {V(SEL+1)}, v10, v11, vcc
    v_cndmask_b32 {V(SEL+2)}, v11, v12, vcc
    v_cndmask_b32 {V(SEL+3)}, v12, v11, vcc
    s_lshl_b32 {t0}, {t3}, 7
    s_and_b32 {t1}, {sCQ}, 1
    s_lshl_b32 {t1}, {t1}, 6
    s_add_u32 {t0}, {t0}, {t1}
    s_add_u32 {t0}, {t0}, {L_XN}
    v_lshrrev_b32 v8, 2, {vN}
    v_lshlrev_b32 v8, 10, v8
    v_lshl_add_u32 v8, {vG}, 2, v8
    v_add_u32 v8, {t0}, v8
    s_cmp_ge_u32 {sW}, 4
    s_cbranch_scc1 L_p_ap
    s_waitcnt lgkmcnt(0)
    """)
    tag(g)
    g("""
    s_barrier
    L_p_ap:
    """)
    for i in range(8):
        g(f'v_xor_b32 v9, {i*16}, v8')
        g(f'ds_read_b32 v{12+i}, v9')
    g(f"""
    s_lshl_b32 {t0}, {sW}, 11
    s_add_u32 {t0}, {t0}, {L_QA}
    v_lshlrev_b32 v8, 4, {vL}
    v_add_u32 {V(pQPw)}, {t0}, v8
    v_lshlrev_b32 v8, 2, v0
    v_add_u32 {V(pQPr)}, {L_QA}, v8
    v_bfe_u32 v8, v0, 6, 2
    v_mul_u32_u24 v8, 320, v8
    v_bfe_u32 v9, v0, 2, 4
    v_lshl_add_u32 v8, v9, 4, v8
    v_lshrrev_b32 v9, 8, v0
    v_lshl_add_u32 v8, v9, 3, v8
    v_and_b32 v9, 3, v0
    v_lshl_add_u32 v8, v9, 1, v8
    v_add_u32 {V(pQw)}, {L_Q}, v8
    v_and_b32 v9, 3, {vN}
    v_mul_u32_u24 v8, 320, v9
    v_lshl_add_u32 v8, {vG}, 4, v8
    v_add_u32 {V(pQr)}, {L_Q}, v8
    v_mul_u32_u24 v8, 288, v9
    v_lshl_add_u32 v8, {vG}, 3, v8
    s_lshl_b32 {t0}, {sW}, 5
    s_add_u32 {t0}, {t0}, {L_CC}
    v_add_u32 {V(pQOw)}, {t0}, v8
    s_mul_i32 {t0}, {sW}, 288
    s_add_u32 {t0}, {t0}, {L_CC}
    v_lshlrev_b32 v8, 4, {vN}
    v_add_u32 {V(pQOr)}, {t0}, v8
    s_lshl_b32 {t0}, {sW}, 15
    s_lshl_b32 {t1}, {sH}, 10
    s_add_u32 {t0}, {t0}, {t1}
    s_lshl_b32 {t1}, {sCQ}, 8
    s_add_u32 {t0}, {t0}, {t1}
    s_add_u32 {t0}, {t0}, {WS_QABS}
    v_add_u32 {V(pPUB)}, {t0}, v8
    v_lshlrev_b32 v8, 3, {vL}
    v_add_u32 {V(pFP)}, {WS_FLAGP}, v8
    """)
    ckv_addr(g)
    for i in range(8):
        g(f's_waitcnt lgkmcnt({7-i})')
        for k in range(4):
            g(f'v_perm_b32 {V(AP+4*i+k)}, v{12+i}, v{12+i}, {V(SEL+k)}')
    g.stamp(2)
    for i in range(8):
        R = WQ + 8*i
        g(f"""
        s_waitcnt vmcnt({4 + 2*(7-i)})
        v_swap_b32 {V(R+2)}, {V(R+4)}
        v_swap_b32 {V(R+3)}, {V(R+5)}
        {MFMA} {V(D1,4)}, {V(AP+4*i,4)}, {V(R,4)}, {V(D1,4) if i else 0}
        {MFMA} {V(D2,4)}, {V(AP+4*i,4)}, {V(R+4,4)}, {V(D2,4) if i else 0}
        """)
    g.stamp(3)
    E = o['early']
    g(f"""
    ds_write_b128 {V(pQPw)}, {V(D1,4)}
    ds_write_b128 {V(pQPw)}, {V(D2,4)} offset:1024
    s_cmp_ge_u32 {sW}, 4
    s_cbranch_scc1 L_p_c1
    s_call_b64 s[46:47], L_setup
    """)
    ckv_dma(g, range(7, 7-E, -1), True)
    g(f"""
    s_waitcnt vmcnt({4*E})
    s_branch L_p_c2
    L_p_c1:
    s_waitcnt vmcnt(0)
    global_load_dwordx2 {V(pFD,2)}, {V(pFP)}, {pWS} sc1
    L_p_c2:
    """)
    for t in range(4): g(f'ds_read_b128 {V(WUKF+4*t,4)}, {V(pWK+t)}')
    g("""
    s_waitcnt lgkmcnt(0)
    s_barrier
    """)
    for k in range(4): g(f'ds_read2st64_b32 {V(12+2*k,2)}, {V(pQPr)} offset0:{16*k} offset1:{16*k+8}')
    g(f"""
    s_mov_b32 s44, 0x000f000f
    s_mov_b32 s45, 0x000f000f
    s_waitcnt lgkmcnt(2)
    v_add_f32 v12, v12, v13
    v_add_f32 v14, v14, v15
    s_waitcnt lgkmcnt(0)
    v_add_f32 v16, v16, v17
    v_add_f32 v18, v18, v19
    v_add_f32 v12, v12, v14
    v_add_f32 v16, v16, v18
    v_add_f32 v12, v12, v16
    v_cvt_pk_bf16_f32 v12, v12, v12
    ds_write_b16 {V(pQw)}, v12
    s_waitcnt lgkmcnt(0)
    s_barrier
    """)
    for t in range(4): g(f'ds_read_b128 {V(QF+4*t,4)}, {V(pQr)} offset:{64*t}')
    for t in range(4):
        g(f's_waitcnt lgkmcnt({3-t})')
        g(f'{MFMA} {V(DQ,4)}, {V(WUKF+4*t,4)}, {V(QF+4*t,4)}, {V(DQ,4) if t else 0}')
    g(f"""
    v_cvt_pk_bf16_f32 v12, {V(DQ)}, {V(DQ+1)}
    v_cvt_pk_bf16_f32 v13, {V(DQ+2)}, {V(DQ+3)}
    s_mov_b64 exec, {sM}
    ds_write_b64 {V(pQOw)}, v[12:13]
    s_mov_b64 exec, -1
    s_waitcnt lgkmcnt(0)
    s_barrier
    s_cmp_ge_u32 {sW}, 4
    s_cbranch_scc1 L_p_fp
    s_mov_b64 exec, 0xffff
    ds_read_b128 v[12:15], {V(pQOr)}
    s_waitcnt lgkmcnt(0)
    global_store_dwordx4 {V(pPUB)}, v[12:15], {pWS} sc1
    s_mov_b64 exec, -1
    """)
    g.stamp(4)
    ckv_dma(g, range(7-E, -1, -1), True)
    g.stamp(5)
    g(f"""
    s_branch L_ldw
    L_p_fp:
    s_mov_b32 {sCNT}, 0
    s_waitcnt vmcnt(0)
    L_pfp:
    v_cmp_ne_u32 vcc, {sTAG}, {V(pFD)}
    s_cbranch_vccz L_b0b
    s_add_u32 {sCNT}, {sCNT}, 1
    s_cmp_ge_u32 {sCNT}, {o['maxpoll']}
    s_cbranch_scc1 L_b0b
    s_sleep {o['fsleep']}
    global_load_dwordx2 {V(pFD,2)}, {V(pFP)}, {pWS} sc1
    s_waitcnt vmcnt(0)
    s_branch L_pfp
    """)
    setup_att(g)
    g(f"""
    L_nonp:
    s_cmp_lg_u32 {sW}, 7
    s_cbranch_scc1 L_n_su
    """)
    if o['tuk']:
        g(f"""
        s_lshl_b32 {t0}, {sCQ}, 20
        s_lshl_b32 {t1}, {sH}, 8
        s_add_u32 {t0}, {t0}, {t1}
        v_lshrrev_b32 v8, 1, {vL}
        v_lshlrev_b32 v8, 13, v8
        v_and_b32 v9, 1, {vL}
        v_lshl_add_u32 v8, v9, 7, v8
        v_add_u32 v8, {t0}, v8
        """)
        for k in range(4):
            if k: g('v_add_u32 v8, 0x40000, v8')
            g(f'global_load_dword v{16+k}, v8, {pWUK} {nt}')
    g(f"""
    s_lshl_b32 {t3}, {sX}, 4
    s_lshr_b32 {t1}, {sR}, 1
    s_add_u32 {t3}, {t3}, {t1}
    s_mul_i32 {t1}, {t3}, {CLR_PER}
    s_add_u32 {t1}, {t1}, {WS_CLR}
    v_lshlrev_b32 v8, 4, {vL}
    v_add_u32 v8, {t1}, v8
    v_mov_b32 v12, -1
    v_mov_b32 v13, -1
    v_mov_b32 v14, -1
    v_mov_b32 v15, -1
    """)
    for i in range(0 if o['noclr'] else CLR_PER // 1024):
        if i and i % 4 == 0: g('v_add_u32 v8, 0x1000, v8')
        g(f'global_store_dwordx4 v8, v[12:15], {pWS} offset:{(i % 4)*1024} sc1')
    g(f"""
    {'' if o['nobc'] else 's_barrier'}
    s_call_b64 s[46:47], L_setup
    s_branch L_n_x
    L_n_su:
    s_call_b64 s[46:47], L_setup
    """)
    ckv_addr(g)
    g(f"""
    {'' if o['nobc'] else 's_barrier'}
    s_cmp_ge_u32 {sW}, 4
    s_cbranch_scc1 L_n_x
    """)
    g.stamp(1)
    ckv_dma(g, range(8), False)
    g.stamp(5)
    g('L_n_x:')
    setup_x(g)
    g('s_waitcnt lgkmcnt(0)')
    tag(g)
    g(f"""
    s_cmp_lg_u32 {sW}, 7
    s_cbranch_scc1 L_n_done
    s_lshl_b32 {t3}, {t3}, 3
    s_add_u32 {t3}, {t3}, {WS_FLAGN}
    v_mov_b32 v9, {t3}
    v_mov_b32 v10, {sTAG}
    v_mov_b32 v11, {sTAG}
    v_lshlrev_b32 v8, 3, {vL}
    v_add_u32 v8, {WS_FLAGP + 512}, v8
    s_mov_b64 exec, 1
    s_waitcnt vmcnt(0)
    global_store_dwordx2 v9, v[10:11], {pWS} sc1
    s_mov_b64 exec, -1
    """)
    g.stamp(1)
    lab = poll_begin(g, 'pf')
    g(f"""
    global_load_dwordx2 v[14:15], v8, {pWS} sc1
    s_waitcnt vmcnt(0)
    v_cmp_ne_u32 vcc, {sTAG}, v14
    """)
    poll_end(g, lab, o['fsleep'])
    g.stamp(5)
    g(f"""
    L_n_done:
    s_cmp_ge_u32 {sW}, 4
    s_cbranch_scc1 L_b0b
    L_ldw:
    s_waitcnt vmcnt(0)
    L_b0b:
    s_barrier
    """)
    g.stamp(6)
    g(f"""
    s_cmp_lt_u32 {sW}, 4
    s_cbranch_scc1 L_sfr
    """)
    for j in range(4): g(f'global_load_dwordx4 {V(GQ+4*j,4)}, {V(aGQ)}, {pWS} offset:{j*1024} sc1')
    g('L_sfr:')
    for t in range(16): g(f'ds_read_b128 {V(SFR+4*t,4)}, {V(AS+(t&3))} offset:{256*(t>>2)}')
    g(f"""
    s_cmp_lt_u32 {sW}, 4
    s_cbranch_scc1 L_b0a
    s_mov_b32 {sCNT}, 0
    L_pq:
    s_waitcnt vmcnt(0)
    """)
    check_sent(g, 'v14', [V(GQ+k) for k in range(16)])
    g(f"""
    s_cbranch_vccz L_pq_ok
    s_add_u32 {sCNT}, {sCNT}, 1
    s_cmp_ge_u32 {sCNT}, {o['maxpoll']}
    s_cbranch_scc1 L_pq_ok
    {'s_mov_b64 exec, vcc' if o['mask'] else ''}
    {'s_sleep '+str(o['sleep']) if o['sleep'] else ''}
    """)
    for j in range(4): g(f'global_load_dwordx4 {V(GQ+4*j,4)}, {V(aGQ)}, {pWS} offset:{j*1024} sc1')
    g("""
    s_branch L_pq
    L_pq_ok:
    s_mov_b64 exec, -1
    """)
    for j in range(4): g(f'ds_write_b128 {V(aQW+j)}, {V(GQ+4*j,4)} offset:{j*1024}')
    g(f"""
    global_load_dwordx4 v[16:19], {V(aFN)}, {pWS} sc1
    s_waitcnt lgkmcnt(0)
    L_b0a:
    s_barrier
    """)
    g.stamp(7)
    for t in range(15): g(f'ds_read_b128 {V(QFR+4*t,4)}, {V(AQ+(t&3))} offset:{256*(t>>2)}')
    g(f"""
    s_cmp_eq_u32 {sHH}, 0
    s_cbranch_scc1 L_nostg
    """)
    for j in range(4):
        g(f'v_xor_b32 v9, {j << 13}, {V(aWS)}')
        g(f'global_load_dwordx4 {V(ST+4*j,4)}, v9, {pWUV} {nt}')
    g('L_nostg:')
    if o['touch']:
        g(f"""
        s_cmp_ge_u32 {sW}, 4
        s_cbranch_scc1 L_notch
        s_cmp_ge_u32 {sW}, 2
        s_cbranch_scc1 L_tch2
        s_lshl_b32 {t0}, {sR}, 17
        s_lshl_b32 {t1}, {sW}, 16
        s_add_u32 {t0}, {t0}, {t1}
        s_lshl_b32 {t1}, {sX}, 7
        s_add_u32 {t0}, {t0}, {t1}
        v_lshlrev_b32 v8, 10, {vL}
        v_add_u32 v9, {t0}, v8
        global_load_dword v20, v9, {pWO} {nt}
        s_mul_i32 {t0}, {sR}, {56*1024}
        s_add_u32 {t0}, {t0}, {t1}
        s_mul_i32 {t1}, {sW}, {28*1024}
        s_add_u32 {t0}, {t0}, {t1}
        v_min_u32 v8, {27*1024}, v8
        v_add_u32 v9, {t0}, v8
        global_load_dword v21, v9, {pWD} {nt}
        s_branch L_notch
        L_tch2:
        s_mul_i32 {t0}, {sR}, {16*3584}
        s_and_b32 {t1}, {sW}, 1
        s_mul_i32 {t1}, {t1}, {8*3584}
        s_add_u32 {t0}, {t0}, {t1}
        s_mul_i32 {t1}, {sX}, 448
        s_and_b32 {t1}, {t1}, 0xffffff80
        s_add_u32 {t0}, {t0}, {t1}
        v_bfe_u32 v8, {vL}, 2, 3
        v_mul_u32_u24 v8, 3584, v8
        v_and_b32 v9, 3, {vL}
        v_lshlrev_b32 v9, 7, v9
        v_add3_u32 v9, v8, v9, {t0}
        s_mov_b64 exec, 0xffffffff
        global_load_dword v20, v9, {pWG} {nt}
        global_load_dword v21, v9, {pWU} {nt}
        s_mov_b64 exec, -1
        L_notch:
        """)
    for t in range(16):
        g(f's_waitcnt lgkmcnt({14 if t == 0 else 15-t})')
        g(f'{MFMA} {V(SA,4)}, {V(SFR+4*t,4)}, {V(QFR+4*t,4)}, {V(SA,4) if t else 0}')
        if t == 0: g(f'ds_read_b128 {V(QFR+60,4)}, {V(AQ+3)} offset:768')
    g(f"""
    s_mov_b32 {t2}, {hex(f2i(SCALE))}
    v_max_f32 v8, {V(SA)}, {V(SA+1)}
    v_max3_f32 v8, v8, {V(SA+2)}, {V(SA+3)}
    v_mov_b32 v9, v8
    v_permlane16_swap_b32 v9, v8
    v_max_f32 v8, v8, v9
    v_mov_b32 v9, v8
    v_permlane32_swap_b32 v9, v8
    v_max_f32 v8, v8, v9
    ds_write_b32 {V(aMXw)}, v8
    s_waitcnt lgkmcnt(0)
    s_barrier
    """)
    g.stamp(8)
    def trd(ks, tau, a):
        return f'ds_read_b64_tr_b16 {V(QFR + (ks*4+tau)*4 + 2*a, 2)}, {V(AV + 8*(ks>>1) + 2*tau + a)} offset:{a*1024 + (ks&1)*32768}'
    trs = [(ks, tau, a) for ks in range(4) for tau in range(4) for a in range(2)]
    g(f"""
    ds_read_b128 {V(OA,4)}, {V(aMXr)}
    ds_read_b128 {V(OA+4,4)}, {V(aMXr)} offset:16
    """)
    for x in trs[:12]: g(trd(*x))
    g(f"""
    s_waitcnt lgkmcnt(12)
    v_max3_f32 v8, {V(OA)}, {V(OA+1)}, {V(OA+2)}
    v_max3_f32 v9, {V(OA+3)}, {V(OA+4)}, {V(OA+5)}
    v_max3_f32 v8, v8, {V(OA+6)}, {V(OA+7)}
    v_max_f32 v8, v8, v9
    v_mul_f32 v8, {t2}, v8
    v_fma_f32 v12, {V(SA)}, {t2}, -v8
    v_fma_f32 v13, {V(SA+1)}, {t2}, -v8
    v_fma_f32 v14, {V(SA+2)}, {t2}, -v8
    v_fma_f32 v15, {V(SA+3)}, {t2}, -v8
    v_exp_f32 v12, v12
    v_exp_f32 v13, v13
    v_exp_f32 v14, v14
    v_exp_f32 v15, v15
    v_cvt_pk_bf16_f32 v12, v12, v13
    v_cvt_pk_bf16_f32 v13, v14, v15
    ds_write_b64 {V(aPLw)}, v[12:13]
    s_cmp_lt_u32 {sW}, 4
    s_cbranch_scc1 L_b2
    s_mov_b32 {sCNT}, 0
    s_cmp_eq_u32 {sHH}, 0
    s_cbranch_scc1 L_fn0
    s_waitcnt vmcnt(4)
    s_branch L_fn
    L_fn0:
    s_waitcnt vmcnt(0)
    L_fn:
    v_cmp_ne_u32 vcc, {sTAG}, v16
    v_cmp_ne_u32 {sM}, {sTAG}, v18
    s_or_b64 vcc, vcc, {sM}
    s_cbranch_vccz L_b2
    s_add_u32 {sCNT}, {sCNT}, 1
    s_cmp_ge_u32 {sCNT}, {o['maxpoll']}
    s_cbranch_scc1 L_b2
    global_load_dwordx4 v[16:19], {V(aFN)}, {pWS} sc1
    s_branch L_fn0
    L_b2:
    s_waitcnt lgkmcnt(0)
    s_barrier
    """)
    g.stamp(9)
    seq = [('p', k) for k in range(4)] + [('t', x) for x in trs[12:]]
    issued = 0
    def issue(upto):
        nonlocal issued
        while issued < min(upto, len(seq)):
            kind, x = seq[issued]
            g(f'ds_read_b128 {V(PF+4*x,4)}, {V(aPLr)} offset:{64*x}' if kind == 'p' else trd(*x))
            issued += 1
    issue(14)
    g(f"""
    s_cmp_lg_u32 {sW}, 7
    s_cbranch_scc1 L_nol
    v_mov_b32 v12, 0x3f803f80
    v_mov_b32 v13, 0x3f803f80
    v_mov_b32 v14, 0x3f803f80
    v_mov_b32 v15, 0x3f803f80
    s_waitcnt lgkmcnt(10)
    """)
    for ks in range(4): g(f'{MFMA} {V(LA,4)}, v[12:15], {V(PF+4*ks,4)}, {V(LA,4) if ks else 0}')
    g('L_nol:')
    lastwait = None
    for ks in range(4):
        for tau in range(4):
            need = seq.index(('p', ks))
            if (ks, tau, 1) in trs[12:]: need = max(need, seq.index(('t', (ks, tau, 1))))
            cnt = issued - 1 - need
            if lastwait is None or need > lastwait:
                g(f's_waitcnt lgkmcnt({cnt})'); lastwait = need
            g(f'{MFMA} {V(OA+4*tau,4)}, {V(PF+4*ks,4)}, {V(QFR+(ks*4+tau)*4,4)}, {V(OA+4*tau,4) if ks else 0}')
            issue(min(len(seq), lastwait + 1 + 14))
        if ks == 0:
            g(f"""
            s_cmp_lg_u32 {sW}, 7
            s_cbranch_scc1 L_nosm
            v_mov_b32 v9, {V(LA)}
            s_mov_b64 exec, 0xffff
            global_store_dwordx2 {V(aSM)}, v[8:9], {pWS} sc1
            s_mov_b64 exec, -1
            L_nosm:
            """)
    for i in range(4):
        g(f'v_cvt_pk_bf16_f32 v{12+2*i}, {V(OA+i)}, {V(OA+4+i)}')
        g(f'v_cvt_pk_bf16_f32 v{13+2*i}, {V(OA+8+i)}, {V(OA+12+i)}')
        if i: g(f'v_add_u32 {V(aPT)}, 0x20000, {V(aPT)}')
        g(f'global_store_dwordx2 {V(aPT)}, {V(12+2*i,2)}, {pWS} sc1')
    g.stamp(10)
    g(f"""
    s_lshr_b32 {t3}, {sR}, 1
    s_barrier
    s_cmp_eq_u32 {sHH}, 1
    s_cbranch_scc1 L_x
    s_cmp_lt_u32 {t3}, 8
    s_cbranch_scc1 L_y
    s_sub_u32 {t3}, {t3}, 8
    s_cmp_lt_u32 {t3}, 4
    s_cbranch_scc1 L_f2
    s_sub_u32 {t3}, {t3}, 4
    s_branch L_f1
    """)
    WF, XD, A0, XA, CF = 64, 80, 96, 112, 116
    g("""
    L_x:
    s_waitcnt vmcnt(4)
    """)
    for j in range(4): g(f'ds_write_b128 {V(aWVw)}, {V(ST+4*j,4)} offset:{L_WV + j*1152}')
    g(f"""
    s_waitcnt lgkmcnt(0)
    s_barrier
    """)
    for t in range(4):
        for a in range(2):
            g(f'ds_read_b64_tr_b16 {V(WF+4*t+2*a,2)}, {V(aWVr)} offset:{L_WV + t*9216 + a*1152}')
    g(f"""
    s_cmp_ge_u32 {sW}, 2
    s_cbranch_scc1 L_bw
    """)
    lab = poll_begin(g, 'pm')
    g(f"""
    global_load_dwordx2 v[12:13], {V(aST)}, {pWS} sc1
    s_waitcnt vmcnt(0)
    """)
    check_sent(g, 'v14', ['v12', 'v13'])
    poll_end(g, lab)
    g('v_mov_b32 v14, v12')
    allreduce(g, 'v_max_f32', ['v14'], None, full=False)
    g(f"""
    v_mov_b32 v15, v14
    v_permlane16_swap_b32 v15, v14
    v_max_f32 v14, v14, v15
    v_sub_f32 v12, v12, v14
    v_exp_f32 v12, v12
    v_mul_f32 v13, v12, v13
    """)
    allreduce(g, 'v_add_f32', ['v13'], None, full=False)
    g(f"""
    v_mov_b32 v15, v13
    v_permlane16_swap_b32 v15, v13
    v_add_f32 v13, v13, v15
    v_rcp_f32 v13, v13
    v_mul_f32 v12, v12, v13
    v_cvt_pk_bf16_f32 v12, v12, v12
    ds_write_b16 {V(aWTw)}, v12
    L_bw:
    s_waitcnt lgkmcnt(0)
    s_barrier
    """)
    g.stamp(11)
    for u in range(4): g(f'global_load_dwordx4 {V(XD+4*u,4)}, {V(aDT)}, {pWS} offset:{u*256} sc1')
    g(f"""
    ds_read_b64 v[12:13], {V(aWTr)}
    s_mov_b32 {sCNT}, 0
    s_mov_b32 s44, -1
    s_mov_b32 s45, 0
    s_waitcnt lgkmcnt(0)
    """)
    for u in range(4):
        g(f'v_perm_b32 v14, v{12+(u>>1)}, v{12+(u>>1)}, {V(XS+(u&1))}')
        for j in range(4): g(f'v_and_b32 {V(A0+4*u+j)}, {V(XM+j)}, v14')
    g("""
    L_px:
    s_waitcnt vmcnt(0)
    """)
    check_sent(g, 'v14', [V(XD+k) for k in range(16)])
    g(f"""
    s_cbranch_vccz L_px_ok
    s_add_u32 {sCNT}, {sCNT}, 1
    s_cmp_ge_u32 {sCNT}, {o['maxpoll']}
    s_cbranch_scc1 L_px_ok
    {'s_mov_b64 exec, vcc' if o['mask'] else ''}
    {'s_sleep '+str(o['sleep']) if o['sleep'] else ''}
    """)
    for u in range(4): g(f'global_load_dwordx4 {V(XD+4*u,4)}, {V(aDT)}, {pWS} offset:{u*256} sc1')
    g("""
    s_branch L_px
    L_px_ok:
    s_mov_b64 exec, -1
    """)
    g.stamp(12)
    for u in range(4): g(f'{MFMA} {V(XA,4)}, {V(A0+4*u,4)}, {V(XD+4*u,4)}, {V(XA,4) if u else 0}')
    g(f"""
    v_cvt_pk_bf16_f32 v12, {V(XA)}, {V(XA+1)}
    v_cvt_pk_bf16_f32 v13, {V(XA+2)}, {V(XA+3)}
    s_mov_b64 exec, {sM}
    ds_write_b64 {V(aCCw)}, v[12:13]
    s_mov_b64 exec, -1
    s_waitcnt lgkmcnt(0)
    s_barrier
    """)
    for t in range(4): g(f'ds_read_b128 {V(CF+4*t,4)}, {V(aCCr)} offset:{64*t}')
    g("""
    s_mov_b32 s44, 0x55555555
    s_mov_b32 s45, 0x55555555
    """)
    for t in range(4):
        g(f's_waitcnt lgkmcnt({3-t})')
        g(f'{MFMA} {V(XA,4)}, {V(CF+4*t,4)}, {V(WF+4*t,4)}, {V(XA,4) if t else 0}')
    g(f"""
    v_add_f32 v12, {V(XA)}, {V(XA+1)}
    v_mov_b32_dpp v13, v12 quad_perm:[1,0,3,2] row_mask:0xf bank_mask:0xf
    v_cvt_pk_bf16_f32 v12, v12, v13
    s_mov_b64 exec, {sM}
    global_store_dword {V(aCT)}, v12, {pWS} sc1
    s_mov_b64 exec, -1
    """)
    g.stamp(13)
    g(f"""
    s_cmp_ge_u32 {t3}, 10
    s_cbranch_scc1 L_end
    s_add_u32 {t3}, {t3}, 4
    s_branch L_f1
    """)
    BF, YD, YA = 64, 96, 104
    g(f"""
    L_y:
    s_lshl_b32 {t0}, {t3}, 19
    s_lshl_b32 {t1}, {sW}, 16
    s_add_u32 {t0}, {t0}, {t1}
    s_lshl_b32 {t1}, {sX}, 7
    s_add_u32 {t0}, {t0}, {t1}
    v_lshrrev_b32 v8, 3, {vL}
    v_and_b32 v9, 2, v8
    v_and_b32 v10, 7, {vL}
    v_xor_b32 v9, v9, v10
    v_lshlrev_b32 v9, 4, v9
    v_lshl_add_u32 v8, v8, 10, v9
    v_add_u32 v8, {t0}, v8
    s_lshl_b32 {t2}, {sW}, 13
    s_add_u32 {t2}, {t2}, {L_ROLE}
    """)
    for i in range(8):
        g(f's_add_u32 m0, {t2}, {i*1024}')
        g(f'v_xor_b32 v9, {hex((i << 13) | ((i & 1) << 6))}, v8')
        g(f'global_load_lds_dwordx4 v9, {pWO} {nt}')
    g(f"""
    v_bfe_u32 v8, {vL}, 2, 2
    v_and_b32 v9, 2, v8
    v_and_b32 v10, 1, {vG}
    v_lshl_add_u32 v9, v10, 2, v9
    v_bfe_u32 v10, {vL}, 1, 1
    v_xor_b32 v9, v9, v10
    v_lshlrev_b32 v9, 4, v9
    v_lshl_add_u32 v8, {vG}, 3, v8
    v_lshl_add_u32 v9, v8, 7, v9
    v_and_b32 v10, 1, {vL}
    v_lshl_add_u32 v9, v10, 3, v9
    v_add_u32 v12, {t2}, v9
    v_xor_b32 v13, 32, v12
    v_xor_b32 v14, 64, v12
    v_xor_b32 v15, 96, v12
    s_lshl_b32 {t0}, {t3}, 14
    s_lshr_b32 {t1}, {sW}, 1
    s_lshl_b32 {t1}, {t1}, 12
    s_add_u32 {t0}, {t0}, {t1}
    s_and_b32 {t1}, {sW}, 1
    s_lshl_b32 {t1}, {t1}, 9
    s_add_u32 {t0}, {t0}, {t1}
    s_add_u32 {t0}, {t0}, {WS_CTX}
    v_lshrrev_b32 v8, 2, {vN}
    v_lshlrev_b32 v8, 10, v8
    v_lshl_add_u32 v8, {vG}, 6, v8
    v_and_b32 v9, 3, {vN}
    v_lshl_add_u32 v8, v9, 4, v8
    v_add_u32 v26, {t0}, v8
    s_lshl_b32 {t0}, {sW}, 10
    s_add_u32 {t0}, {t0}, {L_RED}
    v_lshlrev_b32 v8, 4, {vL}
    v_add_u32 v27, {t0}, v8
    s_lshl_b32 {t0}, {sW}, 2
    s_add_u32 {t0}, {t0}, {L_RED}
    v_add_u32 v28, {t0}, v8
    s_lshl_b32 {t0}, {sX}, 12
    s_lshl_b32 {t1}, {t3}, 9
    s_add_u32 {t0}, {t0}, {t1}
    s_lshl_b32 {t1}, {sW}, 7
    s_add_u32 {t0}, {t0}, {t1}
    s_add_u32 {t0}, {t0}, {WS_HPART}
    v_lshlrev_b32 v8, 1, {vL}
    v_add_u32 v29, {t0}, v8
    s_waitcnt vmcnt(0)
    """)
    for T in range(2):
        for tau in range(4):
            for a in range(2):
                g(f'ds_read_b64_tr_b16 {V(BF+(T*4+tau)*4+2*a,2)}, v{12+tau} offset:{T*4096 + a*512}')
    g.stamp(13)
    lab = poll_begin(g, 'py')
    g(f"""
    global_load_dwordx4 {V(YD,4)}, v26, {pWS} sc1
    global_load_dwordx4 {V(YD+4,4)}, v26, {pWS} offset:256 sc1
    s_waitcnt vmcnt(0)
    """)
    check_sent(g, 'v8', [V(YD+k) for k in range(8)])
    poll_end(g, lab)
    g.stamp(14)
    g('s_waitcnt lgkmcnt(0)')
    for T in range(2):
        for tau in range(4):
            g(f'{MFMA} {V(YA+4*tau,4)}, {V(YD+4*T,4)}, {V(BF+(T*4+tau)*4,4)}, {V(YA+4*tau,4) if T else 0}')
    for i in range(4): g(f'v_permlane16_swap_b32 {V(YA+i)}, {V(YA+4+i)}')
    for i in range(4): g(f'v_permlane16_swap_b32 {V(YA+8+i)}, {V(YA+12+i)}')
    for i in range(4): g(f'v_add_f32 {V(YA+i)}, {V(YA+i)}, {V(YA+4+i)}')
    for i in range(4): g(f'v_add_f32 {V(YA+8+i)}, {V(YA+8+i)}, {V(YA+12+i)}')
    for i in range(4): g(f'v_permlane32_swap_b32 {V(YA+i)}, {V(YA+8+i)}')
    for i in range(4): g(f'v_add_f32 v{8+i}, {V(YA+i)}, {V(YA+8+i)}')
    g(f"""
    ds_write_b128 v27, v[8:11]
    s_waitcnt lgkmcnt(0)
    s_barrier
    s_cmp_ge_u32 {sW}, 4
    s_cbranch_scc1 L_end
    """)
    for k in range(4): g(f'ds_read2st64_b32 {V(8+2*k,2)}, v28 offset0:{8*k} offset1:{8*k+4}')
    g(f"""
    s_mov_b32 s44, 0x55555555
    s_mov_b32 s45, 0x55555555
    s_waitcnt lgkmcnt(2)
    v_add_f32 v8, v8, v9
    v_add_f32 v10, v10, v11
    s_waitcnt lgkmcnt(0)
    v_add_f32 v12, v12, v13
    v_add_f32 v14, v14, v15
    v_add_f32 v8, v8, v10
    v_add_f32 v12, v12, v14
    v_add_f32 v8, v8, v12
    v_mov_b32_dpp v9, v8 quad_perm:[1,0,3,2] row_mask:0xf bank_mask:0xf
    v_cvt_pk_bf16_f32 v8, v8, v9
    s_mov_b64 exec, {sM}
    global_store_dword v29, v8, {pWS} sc1
    s_mov_b64 exec, -1
    """)
    g.stamp(15)
    g('s_branch L_end')
    WB, HD, SA_, SB_, H0, AF, DG = 64, 96, 128, 132, 136, 144, 172
    def h_prep():
        g(f'''
        s_lshl_b32 {t0}, {sW}, 10
        v_lshrrev_b32 v8, 1, {vG}
        v_lshlrev_b32 v8, 8, v8
        v_lshl_add_u32 v8, {vN}, 4, v8
        v_and_b32 v9, 1, {vG}
        v_lshl_add_u32 v30, v9, 3, v8
        v_add_u32 v8, {t0}, v30
        global_load_dwordx2 v[16:17], v8, {pX}
        global_load_dwordx2 v[18:19], v8, {pX} offset:512
        v_and_b32 v9, 1, {vN}
        v_cmp_eq_u32 vcc, 1, v9
        v_mov_b32 v10, 0x3f80
        v_mov_b32 v11, 0x3f800000
        v_cndmask_b32 v10, v10, v11, vcc
        v_lshrrev_b32 v9, 1, {vN}
        ''')
        for j in range(8):
            g(f'v_cmp_eq_u32 vcc, {j}, v9')
            g(f'v_cndmask_b32 {V(SA_+j)}, 0, v10, vcc')
        g(f'''
        s_lshl_b32 {t0}, {sW}, 7
        s_add_u32 {t0}, {t0}, {WS_HPART}
        v_lshrrev_b32 v8, 3, {vN}
        v_lshlrev_b32 v8, 12, v8
        v_lshl_add_u32 v8, {vG}, 9, v8
        v_and_b32 v9, 7, {vN}
        v_lshl_add_u32 v8, v9, 4, v8
        v_add_u32 v26, {t0}, v8
        v_add_u32 v27, 0x2000, v26
        v_add_u32 v28, 0x4000, v26
        v_add_u32 v29, 0x6000, v26
        s_waitcnt vmcnt(0)
        ''')
        for al in range(2):
            for k in range(2):
                g(f'v_lshlrev_b32 {V(H0+4*al+2*k)}, 16, v{16+2*al+k}')
                g(f'v_and_b32 {V(H0+4*al+2*k+1)}, 0xffff0000, v{16+2*al+k}')
    def h_gather():
        if o['isleep'] >= 0:
            g(f'''
            s_and_b32 {t0}, {t3}, 7
            s_lshl_b32 {t0}, {t0}, 12
            s_lshl_b32 {t1}, {sW}, 7
            s_add_u32 {t0}, {t0}, {t1}
            s_add_u32 {t0}, {t0}, {WS_HPART}
            v_and_b32 v9, 7, {vL}
            v_lshlrev_b32 v9, 9, v9
            v_add_u32 v9, {t0}, v9
            ''')
            lab = poll_begin(g, 'pi')
            g(f'''
            global_load_dword v10, v9, {pWS} sc1
            s_waitcnt vmcnt(0)
            v_cmp_eq_u32 vcc, -1, v10
            ''')
            poll_end(g, lab, o['isleep'])
        lab = poll_begin(g, 'ph')
        for tau in range(4):
            for u in range(2):
                g(f'global_load_dwordx4 {V(HD+8*tau+4*u,4)}, v{26+tau}, {pWS} offset:{u*2048} sc1')
        g('s_waitcnt vmcnt(0)')
        check_sent(g, 'v8', [V(HD+k) for k in range(32)])
        poll_end(g, lab)
        for k in range(4):
            for al in range(2):
                tau = 2*al + (k >> 1)
                g(f'{MFMA} {V(H0+4*al,4)}, {V(SA_ + 4*(k>>1),4)}, {V(HD+8*tau+4*(k&1),4)}, {V(H0+4*al,4)}')
    g(f'''
    L_f1:
    s_mul_i32 {t0}, {sX}, 14
    s_add_u32 {t3}, {t3}, {t0}
    s_mul_i32 {t0}, {sW}, {64*3584}
    s_lshl_b32 {t1}, {t3}, 5
    s_add_u32 {t0}, {t0}, {t1}
    v_lshrrev_b32 v8, 1, {vL}
    v_mul_u32_u24 v8, 3584, v8
    v_and_b32 v9, 1, {vL}
    v_lshl_add_u32 v8, v9, 4, v8
    v_add_u32 v8, {t0}, v8
    v_add_u32 v9, {32*3584}, v8
    s_lshl_b32 {t2}, {sW}, 13
    s_add_u32 {t2}, {t2}, {L_ROLE}
    ''')
    for mat in range(2):
        for j in range(2):
            g(f's_add_u32 m0, {t2}, {(mat*2+j)*1024}')
            g(f'global_load_lds_dwordx4 v{8+j}, {pWU if mat else pWG} {nt}')
    g(f'''
    v_bfe_u32 v8, {vL}, 2, 2
    v_lshl_add_u32 v8, {vG}, 3, v8
    v_lshlrev_b32 v8, 5, v8
    v_and_b32 v9, 3, {vL}
    v_lshl_add_u32 v8, v9, 3, v8
    v_add_u32 v31, {t2}, v8
    v_and_b32 v8, 3, {vN}
    v_mul_u32_u24 v8, 1088, v8
    v_lshl_add_u32 v8, {vG}, 4, v8
    s_lshl_b32 {t0}, {sW}, 7
    s_add_u32 {t0}, {t0}, {L_HN}
    v_add_u32 v32, {t0}, v8
    s_lshl_b32 {t0}, {sW}, 9
    s_add_u32 {t0}, {t0}, {L_RED}
    v_lshlrev_b32 v8, 4, {vN}
    v_add_u32 v33, {t0}, v8
    v_lshl_add_u32 v8, {vG}, 2, v8
    v_add_u32 v34, {L_RED}, v8
    s_lshl_b32 {t0}, {t3}, 7
    s_add_u32 {t0}, {t0}, {WS_ACT}
    v_lshrrev_b32 v8, 3, {vN}
    v_lshlrev_b32 v8, 6, v8
    v_lshl_add_u32 v8, {vG}, 4, v8
    v_and_b32 v9, 7, {vN}
    v_lshl_add_u32 v8, v9, 1, v8
    v_add_u32 v35, {t0}, v8
    s_cmp_ge_u32 {sW}, 4
    s_cbranch_scc1 L_f1_w
    ''')
    h_prep()
    g(f'''
    s_mul_i32 {t0}, {sW}, 1088
    s_add_u32 {t0}, {t0}, {L_HN}
    v_add_u32 v30, {t0}, v30
    L_f1_w:
    s_waitcnt vmcnt(0)
    ''')
    for mat in range(2):
        for j in range(2):
            for a in range(2):
                g(f'ds_read_b64_tr_b16 {V(WB+(mat*2+j)*4+2*a,2)}, v31 offset:{(mat*2+j)*1024 + a*128}')
    g.stamp(13)
    g(f'''
    s_cmp_ge_u32 {sW}, 4
    s_cbranch_scc1 L_f1_b
    ''')
    h_gather()
    g.stamp(14)
    g(f'''
    v_add_f32 v8, {V(H0)}, {V(H0+1)}
    v_mul_f32 v9, {V(H0)}, {V(H0)}
    v_add_f32 v10, {V(H0+2)}, {V(H0+3)}
    v_fmac_f32 v9, {V(H0+1)}, {V(H0+1)}
    v_add_f32 v11, {V(H0+4)}, {V(H0+5)}
    v_fmac_f32 v9, {V(H0+2)}, {V(H0+2)}
    v_add_f32 v12, {V(H0+6)}, {V(H0+7)}
    v_fmac_f32 v9, {V(H0+3)}, {V(H0+3)}
    v_add_f32 v8, v8, v10
    v_fmac_f32 v9, {V(H0+4)}, {V(H0+4)}
    v_add_f32 v11, v11, v12
    v_fmac_f32 v9, {V(H0+5)}, {V(H0+5)}
    v_add_f32 v8, v8, v11
    v_fmac_f32 v9, {V(H0+6)}, {V(H0+6)}
    v_fmac_f32 v9, {V(H0+7)}, {V(H0+7)}
    ''')
    allreduce(g, 'v_add_f32', ['v8', 'v9'], ['v10', 'v11'])
    g(f'''
    v_mul_f32 v8, {hex(f2i(1/512))}, v8
    v_mul_f32 v9, {hex(f2i(1/512))}, v9
    v_fma_f32 v9, -v8, v8, v9
    v_max_f32 v9, 0, v9
    v_add_f32 v9, {hex(f2i(1e-5))}, v9
    v_rsq_f32 v9, v9
    ''')
    for k in range(8): g(f'v_sub_f32 v{12+k}, {V(H0+k)}, v8')
    for k in range(8): g(f'v_mul_f32 v{12+k}, v{12+k}, v9')
    for k in range(4): g(f'v_cvt_pk_bf16_f32 v{12+k}, v{12+2*k}, v{13+2*k}')
    g(f'''
    ds_write_b64 v30, v[12:13]
    ds_write_b64 v30, v[14:15] offset:512
    L_f1_b:
    s_waitcnt lgkmcnt(0)
    s_barrier
    ds_read_b128 {V(AF,4)}, v32
    ds_read_b128 {V(AF+4,4)}, v32 offset:64
    s_waitcnt lgkmcnt(1)
    {MFMA} {V(DG,4)}, {V(AF,4)}, {V(WB,4)}, 0
    {MFMA} {V(DG+4,4)}, {V(AF,4)}, {V(WB+8,4)}, 0
    s_waitcnt lgkmcnt(0)
    {MFMA} {V(DG,4)}, {V(AF+4,4)}, {V(WB+4,4)}, {V(DG,4)}
    {MFMA} {V(DG+4,4)}, {V(AF+4,4)}, {V(WB+12,4)}, {V(DG+4,4)}
    s_mov_b64 exec, 0xffff
    ds_write_b128 v33, {V(DG,4)}
    ds_write_b128 v33, {V(DG+4,4)} offset:256
    s_mov_b64 exec, -1
    s_waitcnt lgkmcnt(0)
    s_barrier
    s_cmp_lg_u32 {sW}, 0
    s_cbranch_scc1 L_end
    ''')
    for k in range(8): g(f'ds_read2st64_b32 {V(8+2*k,2)}, v34 offset0:{2*k} offset1:{2*k+1}')
    C1 = -2 * 1.4426950408889634 * 0.7978845608028654
    g(f'''
    s_mov_b32 s44, 0x55555555
    s_mov_b32 s45, 0x55555555
    s_mov_b32 {t0}, {hex(f2i(C1*0.044715))}
    v_mov_b32 v24, {hex(f2i(C1))}
    s_waitcnt lgkmcnt(4)
    v_add_f32 v8, v8, v10
    v_add_f32 v9, v9, v11
    v_add_f32 v12, v12, v14
    v_add_f32 v13, v13, v15
    s_waitcnt lgkmcnt(0)
    v_add_f32 v16, v16, v18
    v_add_f32 v20, v20, v22
    v_add_f32 v8, v8, v12
    v_add_f32 v16, v16, v20
    v_add_f32 v17, v17, v19
    v_add_f32 v8, v8, v16
    v_add_f32 v21, v21, v23
    v_mul_f32 v10, v8, v8
    v_add_f32 v9, v9, v13
    v_fma_f32 v10, v10, {t0}, v24
    v_add_f32 v17, v17, v21
    v_mul_f32 v10, v10, v8
    v_add_f32 v9, v9, v17
    v_exp_f32 v10, v10
    v_mul_f32 v8, v8, v9
    v_add_f32 v10, 1.0, v10
    v_rcp_f32 v10, v10
    v_mul_f32 v8, v8, v10
    v_mov_b32_dpp v9, v8 quad_perm:[1,0,3,2] row_mask:0xf bank_mask:0xf
    v_cvt_pk_bf16_f32 v8, v8, v9
    s_mov_b64 exec, {sM}
    global_store_dword v35, v8, {pWS} sc1
    s_mov_b64 exec, -1
    ''')
    g.stamp(15)
    g('s_branch L_end')
    g(f'''
    L_f2:
    s_lshl_b32 {t0}, {sX}, 2
    s_add_u32 {t3}, {t3}, {t0}
    s_mul_i32 {t0}, {sW}, {224*1024}
    s_lshl_b32 {t1}, {t3}, 5
    s_add_u32 {t0}, {t0}, {t1}
    v_lshrrev_b32 v8, 1, {vL}
    v_lshlrev_b32 v8, 10, v8
    v_and_b32 v9, 1, {vL}
    v_lshl_add_u32 v8, v9, 4, v8
    v_add_u32 v8, {t0}, v8
    s_lshl_b32 {t2}, {sW}, 13
    s_add_u32 {t2}, {t2}, {L_ROLE}
    ''')
    for j in range(7):
        g(f's_add_u32 m0, {t2}, {j*1024}')
        if j: g(f'v_add_u32 v8, 0x8000, v8')
        g(f'global_load_lds_dwordx4 v8, {pWD} {nt}')
    g(f'''
    v_bfe_u32 v8, {vL}, 2, 2
    v_lshl_add_u32 v8, {vG}, 3, v8
    v_lshlrev_b32 v8, 5, v8
    v_and_b32 v9, 3, {vL}
    v_lshl_add_u32 v8, v9, 3, v8
    v_add_u32 v31, {t2}, v8
    s_mul_i32 {t0}, {sW}, 1792
    s_add_u32 {t0}, {t0}, {WS_ACT}
    v_and_b32 v8, 3, {vN}
    v_lshlrev_b32 v8, 4, v8
    v_lshl_add_u32 v8, {vG}, 6, v8
    v_add_u32 v32, {t0}, v8
    s_lshl_b32 {t0}, {sW}, 8
    s_add_u32 {t0}, {t0}, {L_RED}
    v_lshlrev_b32 v8, 4, {vN}
    v_add_u32 v33, {t0}, v8
    v_lshl_add_u32 v8, {vG}, 2, v8
    v_add_u32 v34, {L_RED}, v8
    s_lshl_b32 {t0}, {t3}, 6
    s_add_u32 {t0}, {t0}, {L_H32}
    v_lshlrev_b32 v8, 11, {vG}
    v_lshl_add_u32 v8, {vN}, 2, v8
    v_add_u32 v35, {t0}, v8
    s_lshl_b32 {t0}, {t3}, 5
    v_lshlrev_b32 v8, 10, {vG}
    v_lshl_add_u32 v8, {vN}, 1, v8
    v_add_u32 v36, {t0}, v8
    s_cmp_ge_u32 {sW}, 4
    s_cbranch_scc1 L_f2_w
    ''')
    h_prep()
    g(f'''
    s_lshl_b32 {t0}, {sW}, 11
    s_add_u32 {t0}, {t0}, {L_H32}
    v_lshlrev_b32 v30, 1, v30
    v_add_u32 v30, {t0}, v30
    L_f2_w:
    s_waitcnt vmcnt(0)
    ''')
    for j in range(7):
        for a in range(2):
            g(f'ds_read_b64_tr_b16 {V(WB+4*j+2*a,2)}, v31 offset:{j*1024 + a*128}')
    g.stamp(13)
    g(f'''
    s_cmp_ge_u32 {sW}, 4
    s_cbranch_scc1 L_f2_a
    ''')
    h_gather()
    g(f'''
    ds_write_b128 v30, {V(H0,4)}
    ds_write_b128 v30, {V(H0+4,4)} offset:1024
    L_f2_a:
    s_barrier
    ''')
    g.stamp(12)
    lab = poll_begin(g, 'pa')
    for j in range(7): g(f'global_load_dwordx4 {V(AF+4*j,4)}, v32, {pWS} offset:{j*256} sc1')
    g('s_waitcnt vmcnt(0)')
    check_sent(g, 'v8', [V(AF+k) for k in range(28)])
    poll_end(g, lab)
    g.stamp(14)
    g('s_waitcnt lgkmcnt(0)')
    for j in range(7): g(f'{MFMA} {V(DG,4)}, {V(AF+4*j,4)}, {V(WB+4*j,4)}, {V(DG,4) if j else 0}')
    g(f'''
    s_mov_b64 exec, 0xffff
    ds_write_b128 v33, {V(DG,4)}
    s_mov_b64 exec, -1
    s_waitcnt lgkmcnt(0)
    s_barrier
    s_cmp_lg_u32 {sW}, 0
    s_cbranch_scc1 L_end
    ''')
    for k in range(4): g(f'ds_read2st64_b32 {V(8+2*k,2)}, v34 offset0:{2*k} offset1:{2*k+1}')
    g(f'''
    ds_read_b32 v16, v35
    s_mov_b32 s44, 0x55555555
    s_mov_b32 s45, 0x55555555
    s_waitcnt lgkmcnt(3)
    v_add_f32 v8, v8, v9
    v_add_f32 v10, v10, v11
    s_waitcnt lgkmcnt(0)
    v_add_f32 v12, v12, v13
    v_add_f32 v14, v14, v15
    v_add_f32 v8, v8, v10
    v_add_f32 v12, v12, v14
    v_add_f32 v8, v8, v16
    v_add_f32 v8, v8, v12
    v_mov_b32_dpp v9, v8 quad_perm:[1,0,3,2] row_mask:0xf bank_mask:0xf
    v_cvt_pk_bf16_f32 v8, v8, v9
    s_mov_b64 exec, {sM}
    global_store_dword v36, v8, {pOUT}
    s_cmp_lg_u32 {t3}, 0
    s_cbranch_scc1 L_noep
    s_mov_b64 exec, 1
    v_mov_b32 v10, {WS_EPOCH}
    v_mov_b32 v11, {sTAG}
    global_store_dword v10, v11, {pWS} sc1
    L_noep:
    s_mov_b64 exec, -1
    ''')
    g.stamp(15)
    g('L_end:')
    if o['stamps']:
        g('s_waitcnt lgkmcnt(0)')
        for k in range(16): g(f'v_writelane_b32 v4, s{64+2*k}, {k}')
        g(f'''
        s_lshl_b32 {t0}, s2, 3
        s_add_u32 {t0}, {t0}, {sW}
        s_lshl_b32 {t0}, {t0}, 6
        s_add_u32 {t0}, {t0}, {WS_STAMP}
        v_lshlrev_b32 v5, 2, {vL}
        v_add_u32 v5, {t0}, v5
        s_mov_b64 exec, 0xffff
        global_store_dword v5, v4, {pWS}
        ''')
        if o.get('dbg'):
            g(f'''
            s_not_b32 s64, s64
            v_writelane_b32 v4, s64, 0
            v_lshlrev_b32 v5, 2, {vL}
            global_atomic_umax v5, v4, s[26:27] sc1
            ''')
    g('L_exit:')
    g('s_endpgm')
    body, nadd = hazfix.fix('\n'.join(g.L))
    head = f'''; Fused pre-LN compressed-KV attention + GEGLU FFN decode step, one persistent launch (256 workgroups).
; @launch grid=(256,1,1) block=(512,1,1) lds={LDS_BYTES}
.amdgcn_target "amdgcn-amd-amdhsa--gfx950"
.text
.globl {NAME}
.p2align 8
.type {NAME},@function
{NAME}:
'''
    tail = f'''
.section .rodata,"a"
.p2align 6
.amdhsa_kernel {NAME}
  .amdhsa_next_free_vgpr 256
  .amdhsa_next_free_sgpr {96 if o['stamps'] else 48}
  .amdhsa_accum_offset 256
  .amdhsa_group_segment_fixed_size 0
  .amdhsa_kernarg_size 104
  .amdhsa_user_sgpr_count 2
  .amdhsa_user_sgpr_kernarg_segment_ptr 1
  .amdhsa_system_sgpr_workgroup_id_x 1
.end_amdhsa_kernel
'''
    return head + body + tail

if __name__ == '__main__':
    opt = {}
    for a in sys.argv[2:]:
        k, v = a.split('=')
        opt[k] = int(v) if v.lstrip('-').isdigit() else v
    open(sys.argv[1], 'w').write(gen(opt))
```
